```python
import torch

def _softmax(x, axis=-1):
    return torch.softmax(x, dim=axis)
def _gelu(x):
    return torch.nn.functional.gelu(x, approximate="tanh")
def _silu(x):
    return torch.nn.functional.silu(x)
def _sigmoid(x):
    return torch.sigmoid(x)
def _layernorm(x, axis=-1, eps=1e-5):
    m = x.mean(dim=axis, keepdim=True)
    v = x.var(dim=axis, keepdim=True, unbiased=False)
    return (x - m) / torch.sqrt(v + eps)
def _scatter_add(tgt, idx, src, axis=0):
    return tgt.clone().index_add_(axis, idx, src)
def _segment_sum(src, seg, n):
    out = torch.zeros((n,) + src.shape[1:], dtype=src.dtype)
    return out.index_add_(0, seg, src)
def _pad(x, pw):
    flat = tuple(v for pair in reversed(pw) for v in pair)
    return torch.nn.functional.pad(x, flat)

kernel_name = 'gated_mix__sliding_local_dilated__mixer_token_mlp__prompt'

def setup_inputs():

    _w = (lambda a: (lambda t: t.to(torch.bfloat16) if t.is_floating_point() else t)(torch.as_tensor(a)))
    def _A_setup():
        B, S, D = 1, 2048, 512
        return {
            "x": _w((lambda *s: torch.randn(*s, dtype=torch.bfloat16) * 0.05)(B, S, D)),
            "wqkv": _w((lambda *s: torch.randn(*s, dtype=torch.bfloat16) * 0.8)(D, 3 * D)),
            "wo": _w((lambda *s: torch.randn(*s, dtype=torch.bfloat16) * 0.05)(D, D)),
        }
    _A_in = _A_setup()

    def _B_setup():
        B, S, D, F = 1, 2048, 512, 1792
        return {
            "x": _w((lambda *s: torch.randn(*s, dtype=torch.bfloat16) * 0.05)(B, S, D)),
            "w1": _w((lambda *s: torch.randn(*s, dtype=torch.bfloat16) * 1.6)(S, F) * (S ** -0.5)),
            "b1": _w((lambda *s: torch.randn(*s, dtype=torch.bfloat16) * 12.8)(F) * 0.02),
            "w2": _w((lambda *s: torch.randn(*s, dtype=torch.bfloat16) * 0.4)(F, S) * (F ** -0.5)),
            "b2": _w((lambda *s: torch.randn(*s, dtype=torch.bfloat16) * 6.4)(S) * 0.02),
        }
    _B_in = _B_setup()

    return {
        "A_x": _A_in["x"],
        "A_wqkv": _A_in["wqkv"],
        "A_wo": _A_in["wo"],
        "B_x": _B_in["x"],
        "B_w1": _B_in["w1"],
        "B_b1": _B_in["b1"],
        "B_w2": _B_in["w2"],
        "B_b2": _B_in["b2"],
        "gate_w": _w((lambda *s: torch.randn(*s, dtype=torch.bfloat16) * 0.05)(512) * 16.0),
    }

def reference(A_x, A_wqkv, A_wo, B_x, B_w1, B_b1, B_w2, B_b2, gate_w):
    def _A_ref(x, wqkv, wo):
        B, S, D = x.shape
        H = 32; Dh = D // H
        W, dil = 8, 2
        qkv = (lambda x, *d: x.permute(*d))((x @ wqkv).reshape(B, S, 3, H, Dh), 2, 0, 3, 1, 4)
        q, k, v = qkv[0], qkv[1], qkv[2]
        scale = Dh ** -0.5
        pos = torch.arange(S)
        off = torch.arange(W) * dil
        idx = pos[:, None] - off[None, :]
        mask = idx >= 0
        idx_c = torch.where(mask, idx, 0).reshape(-1)
        kg = k[:, :, idx_c, :].reshape(B, H, S, W, Dh)
        vg = v[:, :, idx_c, :].reshape(B, H, S, W, Dh)
        logits = torch.einsum("bhsd,bhswd->bhsw", q, kg) * scale
        logits = torch.where(mask[None, None, :, :], logits, -1e9)
        attn = _softmax(logits, axis=-1)
        o = torch.einsum("bhsw,bhswd->bhsd", attn, vg)
        return (lambda x, *d: x.permute(*d))(o, 0, 2, 1, 3).reshape(B, S, D) @ wo

    def _B_ref(x, w1, b1, w2, b2):
        B, S, D = x.shape
        h = _layernorm(x, axis=-1)
        u = torch.einsum("bsd,sf->bdf", h, w1) + b1
        u = _gelu(u)
        y = torch.einsum("bdf,fs->bds", u, w2) + b2
        return (lambda x, *d: x.permute(*d))(y, 0, 2, 1)

    x = A_x
    g = _sigmoid((x * gate_w).sum(-1, keepdims=True))
    a = _A_ref(x, A_wqkv, A_wo)
    b = _B_ref(x, B_w1, B_b1, B_w2, B_b2)
    return g * a + (1 - g) * b
```

```python
import sys

NAME = "gated_mix__sliding_local_dilated__mixer_token_mlp__prompt"

S, D, F = 2048, 512, 1792
WS_H = 0
WS_O = 2 << 20
WS_U = 4 << 20
WS_G = 6 << 20
BIG = 0x7FFF0000

out = []


def e(s=""):
    out.append("    " + s if s and not s.endswith(":") else s)


def c(s):
    out.append("    ; " + s)


def vr(b, n):
    return f"v[{b}:{b + n - 1}]"


def sr(b, n):
    return f"s[{b}:{b + n - 1}]"


def srd(dst, base_lo, base_hi, nbytes, add=0):
    if add:
        e(f"s_add_u32 s{dst}, s{base_lo}, 0x{add:x}")
        e(f"s_addc_u32 s{dst + 1}, s{base_hi}, 0")
    else:
        e(f"s_mov_b32 s{dst}, s{base_lo}")
        e(f"s_mov_b32 s{dst + 1}, s{base_hi}")
    e(f"s_and_b32 s{dst + 1}, s{dst + 1}, 0xffff")
    e(f"s_mov_b32 s{dst + 2}, 0x{nbytes:x}")
    e(f"s_mov_b32 s{dst + 3}, 0x00020000")


def kernel_begin(name):
    e(".text")
    e(f".globl {name}")
    e(".p2align 8")
    e(f".type {name},@function")
    e(f"{name}:")


def kernel_desc(name, nvgpr, nsgpr=102):
    acc = (nvgpr + 3) // 4 * 4
    e('.section .rodata,"a"')
    e(".p2align 6")
    e(f".amdhsa_kernel {name}")
    e(f"  .amdhsa_next_free_vgpr {nvgpr}")
    e(f"  .amdhsa_next_free_sgpr {nsgpr}")
    e(f"  .amdhsa_accum_offset {acc}")
    e("  .amdhsa_group_segment_fixed_size 0")
    e("  .amdhsa_kernarg_size 96")
    e("  .amdhsa_user_sgpr_count 2")
    e("  .amdhsa_user_sgpr_kernarg_segment_ptr 1")
    e("  .amdhsa_system_sgpr_workgroup_id_x 1")
    e(".end_amdhsa_kernel")


def mfma(d, a, b):
    e(f"v_mfma_f32_16x16x32_bf16 {vr(d, 4)}, {vr(a, 4)}, {vr(b, 4)}, {vr(d, 4)}")


def unpack(lo, hi, src):
    e(f"v_lshlrev_b32 v{lo}, 16, v{src}")
    e(f"v_and_b32 v{hi}, 0xffff0000, v{src}")


def wave_sum(v, sdst):
    for sh in (1, 2, 4, 8):
        e("s_nop 1")
        e(f"v_add_f32_dpp v{v}, v{v}, v{v} row_shr:{sh} row_mask:0xf bank_mask:0xf bound_ctrl:0")
    e("s_nop 1")
    e(f"v_add_f32_dpp v{v}, v{v}, v{v} row_bcast:15 row_mask:0xa bank_mask:0xf")
    e("s_nop 1")
    e(f"v_add_f32_dpp v{v}, v{v}, v{v} row_bcast:31 row_mask:0xc bank_mask:0xf")
    e("s_nop 1")
    e(f"v_readlane_b32 s{sdst}, v{v}, 63")


def lane_fields(vl, vg, vr_, vc4, vt):
    e(f"v_lshrrev_b32 v{vg}, 4, v{vl}")
    e(f"v_bfe_u32 v{vr_}, v{vl}, 2, 2")
    e(f"v_and_b32 v{vc4}, 3, v{vl}")


def tr_read_base(vdst, vl, tile, tmp):
    g, r, c4, f = tmp, tmp + 1, tmp + 2, tmp + 3
    lane_fields(vl, g, r, c4, None)
    e(f"v_lshrrev_b32 v{f}, 1, v{r}")
    e(f"v_and_b32 v{vdst}, 1, v{g}")
    e(f"v_lshl_or_b32 v{f}, v{vdst}, 1, v{f}")
    if isinstance(tile, int):
        e(f"v_xor_b32 v{f}, {tile}, v{f}")
    else:
        e(f"v_xor_b32 v{f}, {tile}, v{f}")
    e(f"v_lshlrev_b32 v{f}, 5, v{f}")
    e(f"v_lshl_add_u32 v{vdst}, v{g}, 3, v{r}")
    e(f"v_lshlrev_b32 v{vdst}, 7, v{vdst}")
    e(f"v_add_u32 v{vdst}, v{vdst}, v{f}")
    e(f"v_lshl_add_u32 v{vdst}, v{c4}, 3, v{vdst}")


def dir_read_base(vdst, vl, tmp):
    n, g = tmp, tmp + 1
    e(f"v_and_b32 v{n}, 15, v{vl}")
    e(f"v_lshrrev_b32 v{g}, 4, v{vl}")
    e(f"v_lshrrev_b32 v{vdst}, 1, v{n}")
    e(f"v_xor_b32 v{vdst}, v{vdst}, v{g}")
    e(f"v_lshlrev_b32 v{vdst}, 4, v{vdst}")
    e(f"v_lshl_add_u32 v{vdst}, v{n}, 7, v{vdst}")


def gelu(x, t, k1s, k2s):
    e(f"v_mul_f32 v{t}, v{x}, v{x}")
    e(f"v_mov_b32 v{t + 1}, s{k1s}")
    e(f"v_fma_f32 v{t}, v{t}, s{k2s}, v{t + 1}")
    e(f"v_mul_f32 v{t}, v{t}, v{x}")
    e(f"v_exp_f32 v{t}, -v{t}")
    e("s_nop 0")
    e(f"v_add_f32 v{t}, 1.0, v{t}")
    e(f"v_rcp_f32 v{t}, v{t}")
    e("s_nop 0")
    e(f"v_mul_f32 v{x}, v{x}, v{t}")


def gen_k2():
    name = "gm_gemm1_kernel"
    R, P = 8, 7
    NST = S // 64
    kernel_begin(name)
    e("s_cmp_ge_u32 s2, 224")
    e("s_cbranch_scc1 K2_done")
    e("s_load_dwordx4 s[28:31], s[0:1], 32")
    e("s_load_dwordx2 s[32:33], s[0:1], 88")
    e("v_and_b32 v1, 63, v0")
    e("v_lshrrev_b32 v2, 6, v0")
    e("s_and_b32 s34, s2, 7")
    e("s_lshr_b32 s35, s2, 3")
    e("s_mul_i32 s34, s34, 28")
    e("s_add_u32 s34, s34, s35")
    e("s_lshr_b32 s35, s34, 3")
    e("s_and_b32 s36, s34, 7")
    e("s_lshl_b32 s35, s35, 7")
    e("s_lshl_b32 s36, s36, 7")
    e("v_readfirstlane_b32 s25, v2")
    e("s_waitcnt lgkmcnt(0)")
    srd(4, 28, 29, S * F * 2)
    srd(8, 32, 33, S * D * 2, WS_H)
    srd(12, 32, 33, D * F * 2, WS_U)
    srd(16, 30, 31, F * 2)
    DA, DB = 4, 6
    e("v_lshrrev_b32 v8, 3, v1")
    e("v_lshl_add_u32 v8, v2, 4, v8")
    e("v_and_b32 v9, 7, v1")
    e("v_bfe_u32 v10, v1, 4, 1")
    for j in range(2):
        e(f"v_or_b32 v11, {2 * j}, v10")
        e("v_lshlrev_b32 v11, 1, v11")
        e("v_xor_b32 v11, v9, v11")
        e("v_lshlrev_b32 v11, 4, v11")
        e(f"v_add_u32 v12, {8 * j}, v8")
        e("s_movk_i32 s26, 3584")
        e("v_mul_lo_u32 v13, v12, s26")
        e(f"v_add3_u32 v{DA + j}, v13, v11, s35")
        e("v_lshlrev_b32 v13, 10, v12")
        e(f"v_add3_u32 v{DB + j}, v13, v11, s36")
    B1 = 14
    e("v_and_b32 v8, 1, v2")
    e("v_lshrrev_b32 v9, 4, v1")
    e("v_lshlrev_b32 v9, 3, v9")
    e("v_lshl_add_u32 v9, v8, 6, v9")
    e("v_add_u32 v9, s35, v9")
    e(f"buffer_load_dwordx2 {vr(B1, 2)}, v9, s[16:19], 0 offen")
    e(f"buffer_load_dwordx2 {vr(B1 + 2, 2)}, v9, s[16:19], 0 offen offset:32")
    e("s_lshl_b32 s22, s25, 11")
    e("s_mov_b32 s20, 0")
    e("s_mov_b32 s21, 0")

    def issue():
        for (vo, sd, so, reg) in ((DA, 4, 20, 0), (DB, 8, 21, 8192)):
            for j in range(2):
                e(f"s_add_u32 m0, s22, {reg + j * 1024}")
                e("s_nop 0")
                e(f"buffer_load_dwordx4 v{vo + j}, {sr(sd, 4)}, s{so} offen lds")
        e(f"s_add_u32 s20, s20, {64 * 3584}")
        e(f"s_add_u32 s21, s21, {64 * 1024}")
        e("s_add_u32 s22, s22, 16384")
        e(f"s_and_b32 s22, s22, 0x{R * 16384 - 1:x}")

    for _ in range(P):
        issue()
    RA, RB = 18, 20
    CA, CB = 22, 24
    e("v_and_b32 v26, 1, v2")
    e("v_lshrrev_b32 v27, 1, v2")
    for i in range(2):
        e(f"v_lshl_add_u32 v28, v26, 1, {i}")
        tr_read_base(RA + i, 1, "v28", 30)
        e(f"v_lshl_add_u32 v28, v27, 1, {i}")
        tr_read_base(RB + i, 1, "v28", 30)
        e(f"v_add_u32 v{RB + i}, 8192, v{RB + i}")
    ACC = 40
    FA, FB = 56, 72
    for i in range(16):
        e(f"v_mov_b32 v{ACC + i}, 0")
    e("s_mov_b32 s23, 0")
    e("s_mov_b32 s24, 0")
    e("K2_loop:")
    e(f"s_waitcnt vmcnt({4 * (P - 1)})")
    e("s_barrier")
    for i in range(2):
        e(f"v_add_u32 v{CA + i}, s23, v{RA + i}")
        e(f"v_add_u32 v{CB + i}, s23, v{RB + i}")

    def rd(kk, which):
        for i in range(2):
            for (cur, fr) in ((CA, FA), (CB, FB)):
                if (cur == CA) != (which == 0):
                    continue
                for h in range(2):
                    e(f"ds_read_b64_tr_b16 {vr(fr + (kk * 2 + i) * 4 + 2 * h, 2)}, v{cur + i} offset:{kk * 4096 + h * 512}")

    rd(0, 0)
    rd(0, 1)
    issue()
    rd(1, 0)
    e("s_add_u32 s23, s23, 16384")
    e(f"s_and_b32 s23, s23, 0x{R * 16384 - 1:x}")
    e("s_waitcnt lgkmcnt(4)")
    for mt in range(2):
        for nt in range(2):
            mfma(ACC + (mt * 2 + nt) * 4, FA + mt * 4, FB + nt * 4)
            if mt == 0 and nt == 0:
                rd(1, 1)
    e("s_waitcnt lgkmcnt(0)")
    for mt in range(2):
        for nt in range(2):
            mfma(ACC + (mt * 2 + nt) * 4, FA + (2 + mt) * 4, FB + (2 + nt) * 4)
    e("s_add_u32 s24, s24, 1")
    e(f"s_cmp_lt_u32 s24, {NST}")
    e("s_cbranch_scc1 K2_loop")
    e("s_mov_b32 s26, 0x40135761")
    e("s_mov_b32 s27, 0x3dd2d3e8")
    e("v_and_b32 v8, 15, v1")
    e("v_lshl_add_u32 v8, v27, 5, v8")
    e("s_lshr_b32 s37, s36, 1")
    e("v_add_u32 v8, s37, v8")
    e("s_movk_i32 s37, 3584")
    e("v_mul_lo_u32 v8, v8, s37")
    e("v_lshrrev_b32 v9, 4, v1")
    e("v_lshlrev_b32 v9, 3, v9")
    e("v_lshl_add_u32 v9, v26, 6, v9")
    e("v_add3_u32 v8, v8, v9, s35")
    e("s_nop 7")
    e("s_nop 7")
    T = 88
    for mt in range(2):
        unpack(T + 8, T + 9, B1 + 2 * mt)
        unpack(T + 10, T + 11, B1 + 2 * mt + 1)
        for nt in range(2):
            a = ACC + (mt * 2 + nt) * 4
            e(f"v_cvt_pk_bf16_f32 v{T}, v{a}, v{a + 1}")
            e(f"v_cvt_pk_bf16_f32 v{T + 1}, v{a + 2}, v{a + 3}")
            unpack(T + 2, T + 3, T)
            unpack(T + 4, T + 5, T + 1)
            for r in range(4):
                e(f"v_add_f32 v{T + 2 + r}, v{T + 2 + r}, v{T + 8 + r}")
            e(f"v_cvt_pk_bf16_f32 v{T}, v{T + 2}, v{T + 3}")
            e(f"v_cvt_pk_bf16_f32 v{T + 1}, v{T + 4}, v{T + 5}")
            unpack(T + 2, T + 3, T)
            unpack(T + 4, T + 5, T + 1)
            for r in range(4):
                gelu(T + 2 + r, T + 6, 26, 27)
            o = T + 12 + (mt * 2 + nt) * 2
            e(f"v_cvt_pk_bf16_f32 v{o}, v{T + 2}, v{T + 3}")
            e(f"v_cvt_pk_bf16_f32 v{o + 1}, v{T + 4}, v{T + 5}")
            e(f"buffer_store_dwordx2 {vr(o, 2)}, v8, s[12:15], 0 offen offset:{nt * 16 * 3584 + mt * 32}"
              if nt * 16 * 3584 + mt * 32 < 4096 else "")
            if nt == 1:
                e(f"v_add_u32 v9, {16 * 3584}, v8")
                e(f"buffer_store_dwordx2 {vr(o, 2)}, v9, s[12:15], 0 offen offset:{mt * 32}")
    e("K2_done:")
    e("s_endpgm")
    kernel_desc(name, 112)
    return name


def gen_k3():
    name = "gm_gemm2_kernel"
    R, P = 8, 7
    N1, N2 = F // 64, D // 64
    kernel_begin(name)
    e("s_cmp_ge_u32 s2, 256")
    e("s_cbranch_scc1 K3_done")
    e("s_load_dwordx2 s[40:41], s[0:1], 16")
    e("s_load_dwordx4 s[44:47], s[0:1], 48")
    e("s_load_dwordx2 s[48:49], s[0:1], 72")
    e("s_load_dwordx2 s[50:51], s[0:1], 88")
    e("v_and_b32 v1, 63, v0")
    e("v_lshrrev_b32 v2, 6, v0")
    e("s_and_b32 s34, s2, 7")
    e("s_lshr_b32 s35, s2, 3")
    e("s_lshl_b32 s34, s34, 5")
    e("s_add_u32 s34, s34, s35")
    e("s_lshr_b32 s35, s34, 3")
    e("s_and_b32 s36, s34, 7")
    e("s_lshl_b32 s35, s35, 6")
    e("s_lshl_b32 s36, s36, 6")
    e("v_readfirstlane_b32 s25, v2")
    e("s_waitcnt lgkmcnt(0)")
    srd(4, 50, 51, D * F * 2, WS_U)
    srd(8, 44, 45, F * S * 2)
    srd(60, 40, 41, D * D * 2)
    srd(64, 50, 51, S * D * 2, WS_O)
    srd(12, 48, 49, S * D * 2)
    srd(16, 46, 47, S * 2)
    srd(68, 50, 51, S * 4, WS_G)
    DA, DB, DA2, DB2 = 4, 6, 8, 10
    e("v_lshrrev_b32 v12, 3, v1")
    e("v_lshl_add_u32 v12, v2, 4, v12")
    e("v_and_b32 v13, 7, v1")
    e("v_bfe_u32 v14, v1, 4, 1")
    for j in range(2):
        e(f"v_add_u32 v16, {8 * j}, v12")
        e(f"v_or_b32 v15, {2 * j}, v14")
        e("v_lshlrev_b32 v15, 1, v15")
        e("v_xor_b32 v15, v13, v15")
        e("v_lshlrev_b32 v15, 4, v15")
        e("v_bfe_u32 v17, v16, 1, 3")
        e("v_xor_b32 v17, v13, v17")
        e("v_lshlrev_b32 v17, 4, v17")
        e("v_add_u32 v18, s36, v16")
        e("s_movk_i32 s26, 3584")
        e("v_mul_lo_u32 v18, v18, s26")
        e(f"v_add_u32 v{DA + j}, v18, v17")
        e("v_lshlrev_b32 v18, 12, v16")
        e("s_lshl_b32 s26, s35, 1")
        e(f"v_add3_u32 v{DB + j}, v18, v15, s26")
        e("v_lshlrev_b32 v18, 10, v16")
        e("s_lshl_b32 s26, s36, 1")
        e(f"v_add3_u32 v{DA2 + j}, v18, v15, s26")
        e("v_add_u32 v18, s35, v16")
        e("v_lshlrev_b32 v18, 10, v18")
        e(f"v_add_u32 v{DB2 + j}, v18, v17")
    GB = 20
    e("v_lshrrev_b32 v27, 1, v2")
    e("v_and_b32 v26, 1, v2")
    e("v_and_b32 v12, 15, v1")
    e("v_lshl_add_u32 v12, v27, 5, v12")
    e("v_add_u32 v12, s35, v12")
    e("v_lshlrev_b32 v13, 2, v12")
    e(f"buffer_load_dword v{GB}, v13, s[68:71], 0 offen")
    e(f"buffer_load_dword v{GB + 1}, v13, s[68:71], 0 offen offset:64")
    e("v_lshlrev_b32 v13, 1, v12")
    e(f"buffer_load_ushort v{GB + 2}, v13, s[16:19], 0 offen")
    e(f"buffer_load_ushort v{GB + 3}, v13, s[16:19], 0 offen offset:32")
    e("v_lshlrev_b32 v24, 10, v12")
    e("v_lshrrev_b32 v13, 4, v1")
    e("v_lshlrev_b32 v13, 3, v13")
    e("v_lshl_add_u32 v13, v26, 6, v13")
    e("s_lshl_b32 s26, s36, 1")
    e("v_add3_u32 v24, v24, v13, s26")
    e("s_lshl_b32 s22, s25, 11")
    e("s_mov_b32 s20, 0")
    e("s_mov_b32 s21, 0")
    e("s_movk_i32 s38, 128")
    e(f"s_mov_b32 s39, {64 * 4096}")
    e("s_mov_b32 s37, 0")

    def issue(tag):
        e(f"s_cmp_lg_u32 s37, {N1}")
        e(f"s_cbranch_scc1 K3_noswap{tag}")
        for k in range(4):
            e(f"s_mov_b32 s{4 + k}, s{60 + k}")
            e(f"s_mov_b32 s{8 + k}, s{64 + k}")
        for k in range(4):
            e(f"v_mov_b32 v{DA + k}, v{DA2 + k}")
        e("s_mov_b32 s20, 0")
        e("s_mov_b32 s21, 0")
        e(f"s_mov_b32 s38, {64 * 1024}")
        e("s_movk_i32 s39, 128")
        e(f"K3_noswap{tag}:")
        for (vo, sd, so, reg) in ((DA, 4, 20, 0), (DB, 8, 21, 8192)):
            for j in range(2):
                e(f"s_add_u32 m0, s22, {reg + j * 1024}")
                e("s_nop 0")
                e(f"buffer_load_dwordx4 v{vo + j}, {sr(sd, 4)}, s{so} offen lds")
        e("s_add_u32 s20, s20, s38")
        e("s_add_u32 s21, s21, s39")
        e("s_add_u32 s37, s37, 1")
        e("s_add_u32 s22, s22, 16384")
        e(f"s_and_b32 s22, s22, 0x{R * 16384 - 1:x}")

    for i in range(P):
        issue(f"p{i}")
    TRA, TRB, DIRA, DIRB = 28, 30, 32, 34
    CUR = 36
    for i in range(2):
        e(f"v_lshl_add_u32 v40, v26, 1, {i}")
        tr_read_base(TRA + i, 1, "v40", 42)
        e(f"v_lshl_add_u32 v40, v27, 1, {i}")
        tr_read_base(TRB + i, 1, "v40", 42)
        e(f"v_add_u32 v{TRB + i}, 8192, v{TRB + i}")
    dir_read_base(DIRA, 1, 42)
    e(f"v_lshl_add_u32 v{DIRB}, v27, 12, v{DIRA}")
    e(f"v_add_u32 v{DIRB}, 8192, v{DIRB}")
    e(f"v_lshl_add_u32 v{DIRA}, v26, 12, v{DIRA}")
    e(f"v_xor_b32 v{DIRA + 1}, 64, v{DIRA}")
    e(f"v_xor_b32 v{DIRB + 1}, 64, v{DIRB}")
    ACC1, ACC2 = 48, 64
    FA, FB = 80, 96
    for i in range(32):
        e(f"v_mov_b32 v{ACC1 + i}, 0")
    e("s_mov_b32 s23, 0")

    def loop(part, n, acc):
        lab = f"K3_loop{part}"
        e("s_mov_b32 s24, 0")
        e(f"{lab}:")
        e(f"s_waitcnt vmcnt({4 * (P - 1)})")
        e("s_barrier")
        dirb, trb = (DIRA, TRB) if part == 1 else (DIRB, TRA)
        dfr, tfr = (FA, FB) if part == 1 else (FB, FA)
        for i in range(2):
            e(f"v_add_u32 v{CUR + i}, s23, v{dirb + i}")
            e(f"v_add_u32 v{CUR + 2 + i}, s23, v{trb + i}")

        def rd_dir(kk):
            for i in range(2):
                e(f"ds_read_b128 {vr(dfr + (kk * 2 + i) * 4, 4)}, v{CUR + kk} offset:{i * 2048}")

        def rd_tr(kk):
            for i in range(2):
                for h in range(2):
                    e(f"ds_read_b64_tr_b16 {vr(tfr + (kk * 2 + i) * 4 + 2 * h, 2)}, v{CUR + 2 + i} offset:{kk * 4096 + h * 512}")

        rd_dir(0)
        rd_tr(0)
        issue(f"l{part}")
        rd_dir(1)
        rd_tr(1)
        e("s_add_u32 s23, s23, 16384")
        e(f"s_and_b32 s23, s23, 0x{R * 16384 - 1:x}")
        e("s_waitcnt lgkmcnt(6)")
        for mt in range(2):
            for nt in range(2):
                mfma(acc + (mt * 2 + nt) * 4, FA + mt * 4, FB + nt * 4)
        e("s_waitcnt lgkmcnt(0)")
        for mt in range(2):
            for nt in range(2):
                mfma(acc + (mt * 2 + nt) * 4, FA + (2 + mt) * 4, FB + (2 + nt) * 4)
        e("s_add_u32 s24, s24, 1")
        e(f"s_cmp_lt_u32 s24, {n}")
        e(f"s_cbranch_scc1 {lab}")

    loop(1, N1, ACC1)
    loop(2, N2, ACC2)
    e("s_nop 7")
    e("s_nop 7")
    T = 112
    for nt in range(2):
        e(f"v_sub_f32 v{T + 12}, 1.0, v{GB + nt}")
        e(f"v_cvt_pk_bf16_f32 v{T + 12}, v{T + 12}, v{T + 12}")
        e(f"v_lshlrev_b32 v{T + 12}, 16, v{T + 12}")
        e(f"v_lshlrev_b32 v{T + 13}, 16, v{GB + 2 + nt}")
        for mt in range(2):
            a1 = ACC1 + (mt * 2 + nt) * 4
            a2 = ACC2 + (mt * 2 + nt) * 4
            e(f"v_cvt_pk_bf16_f32 v{T}, v{a1}, v{a1 + 1}")
            e(f"v_cvt_pk_bf16_f32 v{T + 1}, v{a1 + 2}, v{a1 + 3}")
            unpack(T + 2, T + 3, T)
            unpack(T + 4, T + 5, T + 1)
            for r in range(4):
                e(f"v_add_f32 v{T + 2 + r}, v{T + 2 + r}, v{T + 13}")
            e(f"v_cvt_pk_bf16_f32 v{T}, v{T + 2}, v{T + 3}")
            e(f"v_cvt_pk_bf16_f32 v{T + 1}, v{T + 4}, v{T + 5}")
            unpack(T + 2, T + 3, T)
            unpack(T + 4, T + 5, T + 1)
            for r in range(4):
                e(f"v_mul_f32 v{T + 2 + r}, v{T + 2 + r}, v{T + 12}")
            e(f"v_cvt_pk_bf16_f32 v{T}, v{T + 2}, v{T + 3}")
            e(f"v_cvt_pk_bf16_f32 v{T + 1}, v{T + 4}, v{T + 5}")
            unpack(T + 2, T + 3, T)
            unpack(T + 4, T + 5, T + 1)
            e(f"v_cvt_pk_bf16_f32 v{T}, v{a2}, v{a2 + 1}")
            e(f"v_cvt_pk_bf16_f32 v{T + 1}, v{a2 + 2}, v{a2 + 3}")
            unpack(T + 6, T + 7, T)
            unpack(T + 8, T + 9, T + 1)
            for r in range(4):
                e(f"v_mul_f32 v{T + 6 + r}, v{T + 6 + r}, v{GB + nt}")
            e(f"v_cvt_pk_bf16_f32 v{T}, v{T + 6}, v{T + 7}")
            e(f"v_cvt_pk_bf16_f32 v{T + 1}, v{T + 8}, v{T + 9}")
            unpack(T + 6, T + 7, T)
            unpack(T + 8, T + 9, T + 1)
            for r in range(4):
                e(f"v_add_f32 v{T + 2 + r}, v{T + 2 + r}, v{T + 6 + r}")
            o = T + 16 + (nt * 2 + mt) * 2
            e(f"v_cvt_pk_bf16_f32 v{o}, v{T + 2}, v{T + 3}")
            e(f"v_cvt_pk_bf16_f32 v{o + 1}, v{T + 4}, v{T + 5}")
            if nt == 0:
                e(f"buffer_store_dwordx2 {vr(o, 2)}, v24, s[12:15], 0 offen offset:{mt * 32}")
            else:
                e(f"v_add_u32 v25, {16 * 1024}, v24")
                e(f"buffer_store_dwordx2 {vr(o, 2)}, v25, s[12:15], 0 offen offset:{mt * 32}")
    e("K3_done:")
    e("s_endpgm")
    kernel_desc(name, 144)
    return name


def gen_k1():
    name = "gm_qkv_attn_kernel"
    R, P = 4, 3
    STG = 36864
    NST = D // 64
    BREG = 24576
    kernel_begin(name)
    e("s_cmp_ge_u32 s2, 256")
    e("s_cbranch_scc1 K1_done")
    e("s_load_dwordx4 s[40:43], s[0:1], 0")
    e("s_load_dwordx2 s[44:45], s[0:1], 64")
    e("s_load_dwordx2 s[50:51], s[0:1], 88")
    e("v_and_b32 v1, 63, v0")
    e("v_lshrrev_b32 v2, 6, v0")
    e("s_and_b32 s34, s2, 7")
    e("s_lshr_b32 s35, s2, 3")
    e("s_lshl_b32 s34, s34, 5")
    e("s_add_u32 s34, s34, s35")
    e("s_lshr_b32 s35, s34, 3")
    e("s_and_b32 s36, s34, 7")
    e("s_lshl_b32 s35, s35, 6")
    e("v_readfirstlane_b32 s25, v2")
    e("s_waitcnt lgkmcnt(0)")
    srd(4, 42, 43, D * 3 * D * 2)
    srd(8, 40, 41, S * D * 2)
    srd(12, 50, 51, S * D * 2, WS_H)
    srd(16, 50, 51, S * D * 2, WS_O)
    srd(60, 50, 51, S * 4, WS_G)
    srd(64, 44, 45, D * 2)
    LX = 100
    e("s_lshl_b32 s26, s34, 3")
    e("s_lshl_b32 s27, s25, 1")
    e("s_add_u32 s26, s26, s27")
    e("s_lshl_b32 s27, s26, 10")
    e("v_lshlrev_b32 v3, 4, v1")
    e("v_add_u32 v98, s27, v3")
    e(f"buffer_load_dwordx4 {vr(LX, 4)}, v98, s[8:11], 0 offen")
    e(f"buffer_load_dwordx4 {vr(LX + 4, 4)}, v98, s[8:11], 0 offen offset:1024")
    e(f"buffer_load_dwordx4 {vr(LX + 8, 4)}, v3, s[64:67], 0 offen")
    DA, DB = 4, 6
    e("v_lshrrev_b32 v12, 3, v1")
    e("v_and_b32 v13, 7, v1")
    e("v_bfe_u32 v14, v1, 4, 1")
    e("v_lshl_add_u32 v15, v2, 4, v12")
    e("s_lshl_b32 s26, s36, 7")
    for j in range(2):
        e(f"v_or_b32 v16, {2 * j}, v14")
        e("v_lshlrev_b32 v16, 1, v16")
        e("v_xor_b32 v16, v13, v16")
        e("v_lshlrev_b32 v16, 4, v16")
        e(f"v_add_u32 v17, {8 * j}, v15")
        e("s_movk_i32 s27, 3072")
        e("v_mul_lo_u32 v17, v17, s27")
        e(f"v_add3_u32 v{DA + j}, v17, v16, s26")
    e("v_mul_u32_u24 v15, 24, v2")
    e("v_add_u32 v15, v15, v12")
    for j in range(3):
        e(f"v_add_u32 v17, {8 * j}, v15")
        e("v_bfe_u32 v16, v17, 1, 3")
        e("v_xor_b32 v16, v13, v16")
        e("v_lshlrev_b32 v16, 4, v16")
        e("s_sub_u32 s27, s35, 16")
        e("v_add_u32 v18, s27, v17")
        e("v_max_i32 v18, 0, v18")
        e("v_lshl_add_u32 v18, v18, 10, v16")
        e("v_cmp_gt_u32 vcc, 80, v17")
        e(f"v_mov_b32 v19, 0x{BIG:x}")
        e("s_nop 0")
        e(f"v_cndmask_b32 v{DB + j}, v19, v18, vcc")
    e("s_lshl_b32 s22, s25, 11")
    e("s_mul_i32 s28, s25, 3072")
    e(f"s_add_u32 s28, s28, {BREG}")
    e("s_mov_b32 s20, 0")
    e("s_mov_b32 s21, 0")
    e("s_mov_b32 s29, 0")

    def issue():
        for X in range(3):
            for j in range(2):
                e("s_add_u32 s26, s22, s29")
                e(f"s_add_u32 m0, s26, {X * 7168 + j * 1024}")
                e("s_nop 0")
                e(f"buffer_load_dwordx4 v{DA + j}, s[4:7], s20 offen offset:{X * 1024} lds")
        for j in range(3):
            e("s_add_u32 s26, s28, s29")
            e(f"s_add_u32 m0, s26, {j * 1024}")
            e("s_nop 0")
            e(f"buffer_load_dwordx4 v{DB + j}, s[8:11], s21 offen lds")
        e(f"s_add_u32 s20, s20, {64 * 3072}")
        e("s_add_u32 s21, s21, 128")
        e(f"s_add_u32 s29, s29, {STG}")
        e(f"s_cmp_ge_u32 s29, {R * STG}")
        e("s_cselect_b32 s29, 0, s29")

    for _ in range(P):
        issue()
    e(f"s_waitcnt vmcnt({9 * P})")
    XF = 112
    GW = 128
    for j in range(4):
        unpack(GW + 2 * j, GW + 2 * j + 1, LX + 8 + j)
    e("s_mov_b32 s26, 0x3b000000")
    e("s_mov_b32 s27, 0x3727c5ac")
    e("s_mov_b32 s33, 0xbfb8aa3b")
    for row in range(2):
        x = XF + 8 * row
        for j in range(4):
            unpack(x + 2 * j, x + 2 * j + 1, LX + 4 * row + j)
        t = 136
        e(f"v_add_f32 v{t}, v{x}, v{x + 1}")
        for j in range(2, 8):
            e(f"v_add_f32 v{t}, v{t}, v{x + j}")
        wave_sum(t, 30)
        for j in range(4):
            e(f"v_mul_f32 v{t + 1}, v{x + 2 * j}, v{GW + 2 * j}")
            e(f"v_mul_f32 v{t + 2}, v{x + 2 * j + 1}, v{GW + 2 * j + 1}")
            e(f"v_cvt_pk_bf16_f32 v{t + 1}, v{t + 1}, v{t + 2}")
            unpack(t + 2, t + 3, t + 1)
            if j == 0:
                e(f"v_add_f32 v{t + 4}, v{t + 2}, v{t + 3}")
            else:
                e(f"v_add_f32 v{t + 4}, v{t + 4}, v{t + 2}")
                e(f"v_add_f32 v{t + 4}, v{t + 4}, v{t + 3}")
        wave_sum(t + 4, 31)
        e("s_nop 1")
        e(f"v_mov_b32 v{t}, s26")
        e(f"v_mul_f32 v{t}, s30, v{t}")
        e(f"v_mov_b32 v{t + 5}, 0")
        for j in range(8):
            e(f"v_sub_f32 v{t + 1}, v{x + j}, v{t}")
            e(f"v_fmac_f32 v{t + 5}, v{t + 1}, v{t + 1}")
        wave_sum(t + 5, 32)
        e("s_nop 1")
        e(f"v_mov_b32 v{t + 1}, s26")
        e(f"v_mul_f32 v{t + 1}, s32, v{t + 1}")
        e(f"v_cvt_pk_bf16_f32 v{t + 1}, v{t + 1}, v{t}")
        e(f"v_and_b32 v{t}, 0xffff0000, v{t + 1}")
        e(f"v_lshlrev_b32 v{t + 1}, 16, v{t + 1}")
        e(f"v_add_f32 v{t + 1}, s27, v{t + 1}")
        e(f"v_cvt_pk_bf16_f32 v{t + 1}, v{t + 1}, v{t + 1}")
        e(f"v_lshlrev_b32 v{t + 1}, 16, v{t + 1}")
        e(f"v_sqrt_f32 v{t + 1}, v{t + 1}")
        e("s_nop 0")
        e(f"v_cvt_pk_bf16_f32 v{t + 1}, v{t + 1}, v{t + 1}")
        e(f"v_lshlrev_b32 v{t + 1}, 16, v{t + 1}")
        e(f"v_rcp_f32 v{t + 1}, v{t + 1}")
        e("s_nop 0")
        ho = 144 + 4 * row
        for j in range(4):
            e(f"v_sub_f32 v{t + 2}, v{x + 2 * j}, v{t}")
            e(f"v_sub_f32 v{t + 3}, v{x + 2 * j + 1}, v{t}")
            e(f"v_cvt_pk_bf16_f32 v{t + 2}, v{t + 2}, v{t + 3}")
            unpack(t + 3, t + 4, t + 2)
            e(f"v_mul_f32 v{t + 3}, v{t + 3}, v{t + 1}")
            e(f"v_mul_f32 v{t + 4}, v{t + 4}, v{t + 1}")
            e(f"v_cvt_pk_bf16_f32 v{ho + j}, v{t + 3}, v{t + 4}")
        e(f"buffer_store_dwordx4 {vr(ho, 4)}, v98, s[12:15], 0 offen offset:{row * 1024}")
        e(f"v_mov_b32 v{t + 2}, s31")
        e(f"v_cvt_pk_bf16_f32 v{t + 2}, v{t + 2}, v{t + 2}")
        e(f"v_lshlrev_b32 v{t + 2}, 16, v{t + 2}")
        e(f"v_mul_f32 v{t + 2}, s33, v{t + 2}")
        e(f"v_exp_f32 v{t + 2}, v{t + 2}")
        e("s_nop 0")
        e(f"v_add_f32 v{t + 2}, 1.0, v{t + 2}")
        e(f"v_rcp_f32 v{t + 2}, v{t + 2}")
        e("s_nop 0")
        e(f"v_cvt_pk_bf16_f32 v{t + 2}, v{t + 2}, v{t + 2}")
        e(f"v_lshlrev_b32 v{152 + row}, 16, v{t + 2}")
        e(f"v_lshrrev_b32 v{t + 3}, 8, v98")
        e("s_mov_b64 exec, 1")
        e(f"buffer_store_dword v{152 + row}, v{t + 3}, s[60:63], 0 offen offset:{row * 4}")
        e("s_mov_b64 exec, -1")
    TRA, DIRB = 20, 22
    CUR = 24
    tr_read_base(TRA, 1, "v2", 30)
    dir_read_base(DIRB, 1, 30)
    e(f"v_add_u32 v{DIRB}, {BREG}, v{DIRB}")
    e(f"v_xor_b32 v{DIRB + 1}, 64, v{DIRB}")
    ACC = 160
    FA, FB = 32, 56
    for X in range(3):
        for nt in range(5):
            if X == 0 and nt == 0:
                continue
            for r in range(4):
                e(f"v_mov_b32 v{ACC + (X * 5 + nt) * 4 + r}, 0")
    e("s_mov_b32 s23, 0")
    e("s_mov_b32 s24, 0")
    e("K1_loop:")
    e(f"s_waitcnt vmcnt({9 * (P - 1)})")
    e("s_barrier")
    e(f"v_add_u32 v{CUR}, s23, v{TRA}")
    e(f"v_add_u32 v{CUR + 1}, s23, v{DIRB}")
    e(f"v_add_u32 v{CUR + 2}, s23, v{DIRB + 1}")

    def rd_a(kk):
        for X in range(3):
            for h in range(2):
                e(f"ds_read_b64_tr_b16 {vr(FA + (kk * 3 + X) * 4 + 2 * h, 2)}, v{CUR} offset:{X * 8192 + kk * 4096 + h * 512}")

    def rd_b(kk, nts):
        for nt in nts:
            e(f"ds_read_b128 {vr(FB + (kk * 5 + nt) * 4, 4)}, v{CUR + 1 + kk} offset:{nt * 2048}")

    rd_a(0)
    rd_b(0, range(5))
    issue()
    rd_b(1, range(4))
    e("s_waitcnt lgkmcnt(4)")
    first = True
    for nt in range(5):
        for X in range(3):
            if X == 0 and nt == 0:
                continue
            mfma(ACC + (X * 5 + nt) * 4, FA + X * 4, FB + nt * 4)
            if first:
                rd_b(1, [4])
                rd_a(1)
                first = False
    e(f"s_add_u32 s23, s23, {STG}")
    e(f"s_cmp_ge_u32 s23, {R * STG}")
    e("s_cselect_b32 s23, 0, s23")
    e("s_waitcnt lgkmcnt(0)")
    for nt in range(5):
        for X in range(3):
            if X == 0 and nt == 0:
                continue
            mfma(ACC + (X * 5 + nt) * 4, FA + (3 + X) * 4, FB + (5 + nt) * 4)
    e("s_add_u32 s24, s24, 1")
    e(f"s_cmp_lt_u32 s24, {NST}")
    e("s_cbranch_scc1 K1_loop")
    e("s_waitcnt vmcnt(0)")
    e("s_barrier")
    QR, KR, VRG = 0, 2048, 4608
    e("v_and_b32 v3, 15, v1")
    e("v_lshrrev_b32 v9, 4, v1")
    e("v_lshlrev_b32 v10, 4, v3")
    e("v_and_b32 v11, 1, v9")
    e("v_lshl_add_u32 v10, v11, 3, v10")
    e("v_lshl_add_u32 v10, v2, 13, v10")
    e("v_lshrrev_b32 v11, 1, v9")
    e("v_lshl_add_u32 v12, v11, 10, v10")
    e("v_mul_u32_u24 v11, 1280, v11")
    e("v_add_u32 v13, v11, v10")
    e("s_nop 7")
    for X in range(3):
        for nt in range(5):
            if X == 0 and nt == 0:
                continue
            a = ACC + (X * 5 + nt) * 4
            e(f"v_cvt_pk_bf16_f32 v14, v{a}, v{a + 1}")
            e(f"v_cvt_pk_bf16_f32 v15, v{a + 2}, v{a + 3}")
            if X == 0:
                e(f"ds_write_b64 v12, v[14:15] offset:{QR + (nt - 1) * 256}")
            else:
                e(f"ds_write_b64 v13, v[14:15] offset:{(KR if X == 1 else VRG) + nt * 256}")
    e("v_lshlrev_b32 v10, 4, v1")
    e("v_lshl_add_u32 v10, v2, 13, v10")
    e("s_waitcnt lgkmcnt(0)")
    Q, KK, VV = 32, 40, 104
    for p in range(2):
        e(f"ds_read_b128 {vr(Q + 4 * p, 4)}, v10 offset:{QR + p * 1024}")
    for w in range(8):
        for p in range(2):
            e(f"ds_read_b128 {vr(KK + 8 * w + 4 * p, 4)}, v10 offset:{KR + p * 1280 + (16 - 2 * w) * 16}")
        if w == 5:
            e("s_waitcnt lgkmcnt(8)")
    e("s_waitcnt lgkmcnt(0)")
    for w in range(8):
        for p in range(2):
            e(f"ds_read_b128 {vr(VV + 8 * w + 4 * p, 4)}, v10 offset:{VRG + p * 1280 + (16 - 2 * w) * 16}")
        if w == 5:
            e("s_waitcnt lgkmcnt(8)")
    LG = 168
    for w in range(8):
        e(f"v_mov_b32 v{LG + w}, 0")
    for j in range(8):
        for w in range(8):
            e(f"v_dot2_f32_bf16 v{LG + w}, v{Q + j}, v{KK + 8 * w + j}, v{LG + w}")
    e("s_nop 3")
    e("v_add_u32 v11, s35, v1")
    e("v_mov_b32 v12, 0xce6e0000")
    for u in range(4):
        e(f"v_cvt_pk_bf16_f32 v14, v{LG + 2 * u}, v{LG + 2 * u + 1}")
        unpack(LG + 2 * u, LG + 2 * u + 1, 14)
    for w in range(8):
        e(f"v_mul_f32 v{LG + w}, 0.25, v{LG + w}") if False else e(f"v_mul_f32 v{LG + w}, 0x3e800000, v{LG + w}")
    for w in range(1, 8):
        e(f"v_cmp_le_u32 vcc, {2 * w}, v11")
        e("s_nop 1")
        e(f"v_cndmask_b32 v{LG + w}, v12, v{LG + w}, vcc")
    e(f"v_max3_f32 v13, v{LG}, v{LG + 1}, v{LG + 2}")
    e(f"v_max3_f32 v13, v13, v{LG + 3}, v{LG + 4}")
    e(f"v_max3_f32 v13, v13, v{LG + 5}, v{LG + 6}")
    e(f"v_max_f32 v13, v13, v{LG + 7}")
    e("s_mov_b32 s26, 0x3fb8aa3b")
    for w in range(8):
        e(f"v_sub_f32 v{LG + w}, v{LG + w}, v13")
        e(f"v_mul_f32 v{LG + w}, s26, v{LG + w}")
        e(f"v_exp_f32 v{LG + w}, v{LG + w}")
    e("s_nop 0")
    e(f"v_add_f32 v13, v{LG}, v{LG + 1}")
    for w in range(2, 8):
        e(f"v_add_f32 v13, v13, v{LG + w}")
    e("v_rcp_f32 v13, v13")
    e("s_nop 0")
    for w in range(8):
        e(f"v_mul_f32 v{LG + w}, v{LG + w}, v13")
    PP = 176
    for u in range(4):
        e(f"v_cvt_pk_bf16_f32 v{PP + u}, v{LG + 2 * u}, v{LG + 2 * u + 1}")
    OA = 180
    for j in range(16):
        e(f"v_mov_b32 v{OA + j}, 0")
    e("s_mov_b32 s26, 0x05040100")
    e("s_mov_b32 s27, 0x07060302")
    e("s_waitcnt lgkmcnt(0)")
    TT = 196
    for u in range(4):
        for j in range(8):
            a = VV + 8 * (2 * u) + j
            b = VV + 8 * (2 * u + 1) + j
            e(f"v_perm_b32 v{TT + 2 * j}, v{b}, v{a}, s26")
            e(f"v_perm_b32 v{TT + 2 * j + 1}, v{b}, v{a}, s27")
        for j in range(16):
            e(f"v_dot2_f32_bf16 v{OA + j}, v{TT + j}, v{PP + u}, v{OA + j}")
    e("s_nop 3")
    for j in range(8):
        e(f"v_cvt_pk_bf16_f32 v{TT + j}, v{OA + 2 * j}, v{OA + 2 * j + 1}")
    e("v_lshlrev_b32 v11, 10, v11")
    e("s_lshl_b32 s26, s36, 7")
    e("s_lshl_b32 s27, s25, 5")
    e("s_add_u32 s26, s26, s27")
    e("v_add_u32 v11, s26, v11")
    e(f"buffer_store_dwordx4 {vr(TT, 4)}, v11, s[16:19], 0 offen")
    e(f"buffer_store_dwordx4 {vr(TT + 4, 4)}, v11, s[16:19], 0 offen offset:16")
    e("K1_done:")
    e("s_endpgm")
    kernel_desc(name, 224)
    return name


def main():
    hdr = [
        "; Gated mix of dilated sliding-window attention and MLP-Mixer token mixing (gfx950).",
        "; Generated by gen/gen.py.  Workspace: h @0, o @2MiB, u @4MiB, g @6MiB.",
        "; @launch kernel=gm_qkv_attn_kernel grid=(256,1,1) block=(256,1,1) lds=147456",
        "; @launch kernel=gm_gemm1_kernel grid=(224,1,1) block=(256,1,1) lds=131072",
        "; @launch kernel=gm_gemm2_kernel grid=(256,1,1) block=(256,1,1) lds=131072",
        '.amdgcn_target "amdgcn-amd-amdhsa--gfx950"',
    ]
    gen_k1()
    gen_k2()
    gen_k3()
    txt = "\n".join(hdr + [l for l in out if l.strip() != ""]) + "\n"
    path = sys.argv[1] if len(sys.argv) > 1 else f"cdna_kernels/{NAME}.s"
    open(path, "w").write(txt)


if __name__ == "__main__":
    main()
```

```python
import os
import sys

EXP = os.environ.get("EXP", "")

NAME = "gated_mix__sliding_local_dilated__mixer_token_mlp__prompt"

S, D, F = 2048, 512, 1792
WS_H = 0
WS_O = 2 << 20
WS_U = 4 << 20
WS_G = 6 << 20
BIG = 0x7FFF0000

out = []


def e(s=""):
    out.append("    " + s if s and not s.endswith(":") else s)


def c(s):
    out.append("    ; " + s)


def vr(b, n):
    return f"v[{b}:{b + n - 1}]"


def sr(b, n):
    return f"s[{b}:{b + n - 1}]"


def srd(dst, base_lo, base_hi, nbytes, add=0):
    if add:
        e(f"s_add_u32 s{dst}, s{base_lo}, 0x{add:x}")
        e(f"s_addc_u32 s{dst + 1}, s{base_hi}, 0")
    else:
        e(f"s_mov_b32 s{dst}, s{base_lo}")
        e(f"s_mov_b32 s{dst + 1}, s{base_hi}")
    e(f"s_and_b32 s{dst + 1}, s{dst + 1}, 0xffff")
    e(f"s_mov_b32 s{dst + 2}, 0x{nbytes:x}")
    e(f"s_mov_b32 s{dst + 3}, 0x00020000")


def kernel_begin(name):
    e(".text")
    e(f".globl {name}")
    e(".p2align 8")
    e(f".type {name},@function")
    e(f"{name}:")


def kernel_desc(name, nvgpr, nsgpr=102):
    acc = (nvgpr + 3) // 4 * 4
    e('.section .rodata,"a"')
    e(".p2align 6")
    e(f".amdhsa_kernel {name}")
    e(f"  .amdhsa_next_free_vgpr {nvgpr}")
    e(f"  .amdhsa_next_free_sgpr {nsgpr}")
    e(f"  .amdhsa_accum_offset {acc}")
    e("  .amdhsa_group_segment_fixed_size 0")
    e("  .amdhsa_kernarg_size 96")
    e("  .amdhsa_user_sgpr_count 2")
    e("  .amdhsa_user_sgpr_kernarg_segment_ptr 1")
    e("  .amdhsa_system_sgpr_workgroup_id_x 1")
    e(".end_amdhsa_kernel")


def mfma(d, a, b):
    e(f"v_mfma_f32_16x16x32_bf16 {vr(d, 4)}, {vr(a, 4)}, {vr(b, 4)}, {vr(d, 4)}")


def unpack(lo, hi, src):
    e(f"v_lshlrev_b32 v{lo}, 16, v{src}")
    e(f"v_and_b32 v{hi}, 0xffff0000, v{src}")


def wave_sum(v, sdst):
    for sh in (1, 2, 4, 8):
        e("s_nop 1")
        e(f"v_add_f32_dpp v{v}, v{v}, v{v} row_shr:{sh} row_mask:0xf bank_mask:0xf bound_ctrl:0")
    e("s_nop 1")
    e(f"v_add_f32_dpp v{v}, v{v}, v{v} row_bcast:15 row_mask:0xa bank_mask:0xf")
    e("s_nop 1")
    e(f"v_add_f32_dpp v{v}, v{v}, v{v} row_bcast:31 row_mask:0xc bank_mask:0xf")
    e("s_nop 1")
    e(f"v_readlane_b32 s{sdst}, v{v}, 63")


def lane_fields(vl, vg, vr_, vc4, vt):
    e(f"v_lshrrev_b32 v{vg}, 4, v{vl}")
    e(f"v_bfe_u32 v{vr_}, v{vl}, 2, 2")
    e(f"v_and_b32 v{vc4}, 3, v{vl}")


def tr_read_base(vdst, vl, tile, tmp):
    g, r, c4, f = tmp, tmp + 1, tmp + 2, tmp + 3
    lane_fields(vl, g, r, c4, None)
    e(f"v_lshrrev_b32 v{f}, 1, v{r}")
    e(f"v_and_b32 v{vdst}, 1, v{g}")
    e(f"v_lshl_or_b32 v{f}, v{vdst}, 1, v{f}")
    if isinstance(tile, int):
        e(f"v_xor_b32 v{f}, {tile}, v{f}")
    else:
        e(f"v_xor_b32 v{f}, {tile}, v{f}")
    e(f"v_lshlrev_b32 v{f}, 5, v{f}")
    e(f"v_lshl_add_u32 v{vdst}, v{g}, 3, v{r}")
    e(f"v_lshlrev_b32 v{vdst}, 7, v{vdst}")
    e(f"v_add_u32 v{vdst}, v{vdst}, v{f}")
    e(f"v_lshl_add_u32 v{vdst}, v{c4}, 3, v{vdst}")


def dir_read_base(vdst, vl, tmp):
    n, g = tmp, tmp + 1
    e(f"v_and_b32 v{n}, 15, v{vl}")
    e(f"v_lshrrev_b32 v{g}, 4, v{vl}")
    e(f"v_lshrrev_b32 v{vdst}, 1, v{n}")
    e(f"v_xor_b32 v{vdst}, v{vdst}, v{g}")
    e(f"v_lshlrev_b32 v{vdst}, 4, v{vdst}")
    e(f"v_lshl_add_u32 v{vdst}, v{n}, 7, v{vdst}")


def gelu(x, t, k1s, k2s):
    e(f"v_mul_f32 v{t}, v{x}, v{x}")
    e(f"v_mov_b32 v{t + 1}, s{k1s}")
    e(f"v_fma_f32 v{t}, v{t}, s{k2s}, v{t + 1}")
    e(f"v_mul_f32 v{t}, v{t}, v{x}")
    e(f"v_exp_f32 v{t}, -v{t}")
    e("s_nop 0")
    e(f"v_add_f32 v{t}, 1.0, v{t}")
    e(f"v_rcp_f32 v{t}, v{t}")
    e("s_nop 0")
    e(f"v_mul_f32 v{x}, v{x}, v{t}")


def gen_k2():
    name = "gm_gemm1_kernel"
    R, P = 8, 7
    NST = S // 64
    kernel_begin(name)
    e("s_cmp_ge_u32 s2, 224")
    e("s_cbranch_scc1 K2_done")
    e("s_load_dwordx4 s[28:31], s[0:1], 32")
    e("s_load_dwordx2 s[32:33], s[0:1], 88")
    e("v_and_b32 v1, 63, v0")
    e("v_lshrrev_b32 v2, 6, v0")
    e("s_and_b32 s34, s2, 7")
    e("s_lshr_b32 s35, s2, 3")
    e("s_mul_i32 s34, s34, 28")
    e("s_add_u32 s34, s34, s35")
    e("s_lshr_b32 s35, s34, 3")
    e("s_and_b32 s36, s34, 7")
    e("s_lshl_b32 s35, s35, 7")
    e("s_lshl_b32 s36, s36, 7")
    e("v_readfirstlane_b32 s25, v2")
    e("s_waitcnt lgkmcnt(0)")
    srd(4, 28, 29, S * F * 2)
    srd(8, 32, 33, S * D * 2, WS_H)
    srd(12, 32, 33, D * F * 2, WS_U)
    srd(16, 30, 31, F * 2)
    DA, DB = 4, 6
    e("v_lshrrev_b32 v8, 3, v1")
    e("v_lshl_add_u32 v8, v2, 4, v8")
    e("v_and_b32 v9, 7, v1")
    e("v_bfe_u32 v10, v1, 4, 1")
    for j in range(2):
        e(f"v_or_b32 v11, {2 * j}, v10")
        e("v_lshlrev_b32 v11, 1, v11")
        e("v_xor_b32 v11, v9, v11")
        e("v_lshlrev_b32 v11, 4, v11")
        e(f"v_add_u32 v12, {8 * j}, v8")
        e("s_movk_i32 s26, 3584")
        e("v_mul_lo_u32 v13, v12, s26")
        e(f"v_add3_u32 v{DA + j}, v13, v11, s35")
        e("v_lshlrev_b32 v13, 10, v12")
        e(f"v_add3_u32 v{DB + j}, v13, v11, s36")
    B1 = 14
    e("v_and_b32 v8, 1, v2")
    e("v_lshrrev_b32 v9, 4, v1")
    e("v_lshlrev_b32 v9, 3, v9")
    e("v_lshl_add_u32 v9, v8, 6, v9")
    e("v_add_u32 v9, s35, v9")
    e(f"buffer_load_dwordx2 {vr(B1, 2)}, v9, s[16:19], 0 offen")
    e(f"buffer_load_dwordx2 {vr(B1 + 2, 2)}, v9, s[16:19], 0 offen offset:32")
    e("s_lshl_b32 s22, s25, 11")
    e("s_mov_b32 s20, 0")
    e("s_mov_b32 s21, 0")

    def issue():
        for (vo, sd, so, reg) in ((DA, 4, 20, 0), (DB, 8, 21, 8192)):
            for j in range(2):
                e(f"s_add_u32 m0, s22, {reg + j * 1024}")
                e("s_nop 0")
                e(f"buffer_load_dwordx4 v{vo + j}, {sr(sd, 4)}, s{so} offen lds")
        e(f"s_add_u32 s20, s20, {64 * 3584}")
        e(f"s_add_u32 s21, s21, {64 * 1024}")
        e("s_add_u32 s22, s22, 16384")
        e(f"s_and_b32 s22, s22, 0x{R * 16384 - 1:x}")

    for _ in range(P):
        issue()
    RA, RB = 18, 20
    CA, CB = 22, 24
    e("v_and_b32 v26, 1, v2")
    e("v_lshrrev_b32 v27, 1, v2")
    for i in range(2):
        e(f"v_lshl_add_u32 v28, v26, 1, {i}")
        tr_read_base(RA + i, 1, "v28", 30)
        e(f"v_lshl_add_u32 v28, v27, 1, {i}")
        tr_read_base(RB + i, 1, "v28", 30)
        e(f"v_add_u32 v{RB + i}, 8192, v{RB + i}")
    ACC = 40
    FA, FB = 56, 72
    for i in range(16):
        e(f"v_mov_b32 v{ACC + i}, 0")
    e("s_mov_b32 s23, 0")
    e("s_mov_b32 s24, 0")
    e("K2_loop:")
    e(f"s_waitcnt vmcnt({4 * (P - 1)})")
    e("s_barrier")
    for i in range(2):
        e(f"v_add_u32 v{CA + i}, s23, v{RA + i}")
        e(f"v_add_u32 v{CB + i}, s23, v{RB + i}")

    def rd(kk, which):
        for i in range(2):
            for (cur, fr) in ((CA, FA), (CB, FB)):
                if (cur == CA) != (which == 0):
                    continue
                for h in range(2):
                    e(f"ds_read_b64_tr_b16 {vr(fr + (kk * 2 + i) * 4 + 2 * h, 2)}, v{cur + i} offset:{kk * 4096 + h * 512}")

    if EXP == "dmaonly":
        issue()
    elif EXP == "empty":
        pass
    elif EXP == "mfmaonly":
        for kk in range(2):
            for mt in range(2):
                for nt in range(2):
                    mfma(ACC + (mt * 2 + nt) * 4, FA + (2 * kk + mt) * 4, FB + (2 * kk + nt) * 4)
    elif EXP == "readonly":
        rd(0, 0)
        rd(0, 1)
        rd(1, 0)
        e("s_waitcnt lgkmcnt(4)")
        rd(1, 1)
        e("s_waitcnt lgkmcnt(0)")
    else:
        rd(0, 0)
        rd(0, 1)
        if EXP != "nodma":
            issue()
        rd(1, 0)
        e("s_add_u32 s23, s23, 16384")
        e(f"s_and_b32 s23, s23, 0x{R * 16384 - 1:x}")
        e("s_waitcnt lgkmcnt(4)")
        for mt in range(2):
            for nt in range(2):
                mfma(ACC + (mt * 2 + nt) * 4, FA + mt * 4, FB + nt * 4)
                if mt == 0 and nt == 0:
                    rd(1, 1)
        e("s_waitcnt lgkmcnt(0)")
        for mt in range(2):
            for nt in range(2):
                mfma(ACC + (mt * 2 + nt) * 4, FA + (2 + mt) * 4, FB + (2 + nt) * 4)
    e("s_add_u32 s24, s24, 1")
    e(f"s_cmp_lt_u32 s24, {NST}")
    e("s_cbranch_scc1 K2_loop")
    e("s_mov_b32 s26, 0x40135761")
    e("s_mov_b32 s27, 0x3dd2d3e8")
    e("v_and_b32 v8, 15, v1")
    e("v_lshl_add_u32 v8, v27, 5, v8")
    e("s_lshr_b32 s37, s36, 1")
    e("v_add_u32 v8, s37, v8")
    e("s_movk_i32 s37, 3584")
    e("v_mul_lo_u32 v8, v8, s37")
    e("v_lshrrev_b32 v9, 4, v1")
    e("v_lshlrev_b32 v9, 3, v9")
    e("v_lshl_add_u32 v9, v26, 6, v9")
    e("v_add3_u32 v8, v8, v9, s35")
    e("s_nop 7")
    e("s_nop 7")
    T = 88
    for mt in range(2):
        unpack(T + 8, T + 9, B1 + 2 * mt)
        unpack(T + 10, T + 11, B1 + 2 * mt + 1)
        for nt in range(2):
            a = ACC + (mt * 2 + nt) * 4
            e(f"v_cvt_pk_bf16_f32 v{T}, v{a}, v{a + 1}")
            e(f"v_cvt_pk_bf16_f32 v{T + 1}, v{a + 2}, v{a + 3}")
            unpack(T + 2, T + 3, T)
            unpack(T + 4, T + 5, T + 1)
            for r in range(4):
                e(f"v_add_f32 v{T + 2 + r}, v{T + 2 + r}, v{T + 8 + r}")
            e(f"v_cvt_pk_bf16_f32 v{T}, v{T + 2}, v{T + 3}")
            e(f"v_cvt_pk_bf16_f32 v{T + 1}, v{T + 4}, v{T + 5}")
            unpack(T + 2, T + 3, T)
            unpack(T + 4, T + 5, T + 1)
            for r in range(4):
                gelu(T + 2 + r, T + 6, 26, 27)
            o = T + 12 + (mt * 2 + nt) * 2
            e(f"v_cvt_pk_bf16_f32 v{o}, v{T + 2}, v{T + 3}")
            e(f"v_cvt_pk_bf16_f32 v{o + 1}, v{T + 4}, v{T + 5}")
            e(f"buffer_store_dwordx2 {vr(o, 2)}, v8, s[12:15], 0 offen offset:{nt * 16 * 3584 + mt * 32}"
              if nt * 16 * 3584 + mt * 32 < 4096 else "")
            if nt == 1:
                e(f"v_add_u32 v9, {16 * 3584}, v8")
                e(f"buffer_store_dwordx2 {vr(o, 2)}, v9, s[12:15], 0 offen offset:{mt * 32}")
    e("K2_done:")
    e("s_endpgm")
    kernel_desc(name, 112)
    return name


def gen_k3():
    name = "gm_gemm2_kernel"
    R, P = 8, 7
    N1, N2 = F // 64, D // 64
    kernel_begin(name)
    e("s_cmp_ge_u32 s2, 256")
    e("s_cbranch_scc1 K3_done")
    e("s_load_dwordx2 s[40:41], s[0:1], 16")
    e("s_load_dwordx4 s[44:47], s[0:1], 48")
    e("s_load_dwordx2 s[48:49], s[0:1], 72")
    e("s_load_dwordx2 s[50:51], s[0:1], 88")
    e("v_and_b32 v1, 63, v0")
    e("v_lshrrev_b32 v2, 6, v0")
    e("s_and_b32 s34, s2, 7")
    e("s_lshr_b32 s35, s2, 3")
    e("s_lshl_b32 s34, s34, 5")
    e("s_add_u32 s34, s34, s35")
    e("s_lshr_b32 s35, s34, 3")
    e("s_and_b32 s36, s34, 7")
    e("s_lshl_b32 s35, s35, 6")
    e("s_lshl_b32 s36, s36, 6")
    e("v_readfirstlane_b32 s25, v2")
    e("s_waitcnt lgkmcnt(0)")
    srd(4, 50, 51, D * F * 2, WS_U)
    srd(8, 44, 45, F * S * 2)
    srd(60, 40, 41, D * D * 2)
    srd(64, 50, 51, S * D * 2, WS_O)
    srd(12, 48, 49, S * D * 2)
    srd(16, 46, 47, S * 2)
    srd(68, 50, 51, S * 4, WS_G)
    DA, DB, DA2, DB2 = 4, 6, 8, 10
    e("v_lshrrev_b32 v12, 3, v1")
    e("v_lshl_add_u32 v12, v2, 4, v12")
    e("v_and_b32 v13, 7, v1")
    e("v_bfe_u32 v14, v1, 4, 1")
    for j in range(2):
        e(f"v_add_u32 v16, {8 * j}, v12")
        e(f"v_or_b32 v15, {2 * j}, v14")
        e("v_lshlrev_b32 v15, 1, v15")
        e("v_xor_b32 v15, v13, v15")
        e("v_lshlrev_b32 v15, 4, v15")
        e("v_bfe_u32 v17, v16, 1, 3")
        e("v_xor_b32 v17, v13, v17")
        e("v_lshlrev_b32 v17, 4, v17")
        e("v_add_u32 v18, s36, v16")
        e("s_movk_i32 s26, 3584")
        e("v_mul_lo_u32 v18, v18, s26")
        e(f"v_add_u32 v{DA + j}, v18, v17")
        e("v_lshlrev_b32 v18, 12, v16")
        e("s_lshl_b32 s26, s35, 1")
        e(f"v_add3_u32 v{DB + j}, v18, v15, s26")
        e("v_lshlrev_b32 v18, 10, v16")
        e("s_lshl_b32 s26, s36, 1")
        e(f"v_add3_u32 v{DA2 + j}, v18, v15, s26")
        e("v_add_u32 v18, s35, v16")
        e("v_lshlrev_b32 v18, 10, v18")
        e(f"v_add_u32 v{DB2 + j}, v18, v17")
    GB = 20
    e("v_lshrrev_b32 v27, 1, v2")
    e("v_and_b32 v26, 1, v2")
    e("v_and_b32 v12, 15, v1")
    e("v_lshl_add_u32 v12, v27, 5, v12")
    e("v_add_u32 v12, s35, v12")
    e("v_lshlrev_b32 v13, 2, v12")
    e(f"buffer_load_dword v{GB}, v13, s[68:71], 0 offen")
    e(f"buffer_load_dword v{GB + 1}, v13, s[68:71], 0 offen offset:64")
    e("v_lshlrev_b32 v13, 1, v12")
    e(f"buffer_load_ushort v{GB + 2}, v13, s[16:19], 0 offen")
    e(f"buffer_load_ushort v{GB + 3}, v13, s[16:19], 0 offen offset:32")
    e("v_lshlrev_b32 v24, 10, v12")
    e("v_lshrrev_b32 v13, 4, v1")
    e("v_lshlrev_b32 v13, 3, v13")
    e("v_lshl_add_u32 v13, v26, 6, v13")
    e("s_lshl_b32 s26, s36, 1")
    e("v_add3_u32 v24, v24, v13, s26")
    e("s_lshl_b32 s22, s25, 11")
    e("s_mov_b32 s20, 0")
    e("s_mov_b32 s21, 0")
    e("s_movk_i32 s38, 128")
    e(f"s_mov_b32 s39, {64 * 4096}")
    e("s_mov_b32 s37, 0")

    def issue(tag):
        e(f"s_cmp_lg_u32 s37, {N1}")
        e(f"s_cbranch_scc1 K3_noswap{tag}")
        for k in range(4):
            e(f"s_mov_b32 s{4 + k}, s{60 + k}")
            e(f"s_mov_b32 s{8 + k}, s{64 + k}")
        for k in range(4):
            e(f"v_mov_b32 v{DA + k}, v{DA2 + k}")
        e("s_mov_b32 s20, 0")
        e("s_mov_b32 s21, 0")
        e(f"s_mov_b32 s38, {64 * 1024}")
        e("s_movk_i32 s39, 128")
        e(f"K3_noswap{tag}:")
        for (vo, sd, so, reg) in ((DA, 4, 20, 0), (DB, 8, 21, 8192)):
            for j in range(2):
                e(f"s_add_u32 m0, s22, {reg + j * 1024}")
                e("s_nop 0")
                e(f"buffer_load_dwordx4 v{vo + j}, {sr(sd, 4)}, s{so} offen lds")
        e("s_add_u32 s20, s20, s38")
        e("s_add_u32 s21, s21, s39")
        e("s_add_u32 s37, s37, 1")
        e("s_add_u32 s22, s22, 16384")
        e(f"s_and_b32 s22, s22, 0x{R * 16384 - 1:x}")

    for i in range(P):
        issue(f"p{i}")
    TRA, TRB, DIRA, DIRB = 28, 30, 32, 34
    CUR = 36
    for i in range(2):
        e(f"v_lshl_add_u32 v40, v26, 1, {i}")
        tr_read_base(TRA + i, 1, "v40", 42)
        e(f"v_lshl_add_u32 v40, v27, 1, {i}")
        tr_read_base(TRB + i, 1, "v40", 42)
        e(f"v_add_u32 v{TRB + i}, 8192, v{TRB + i}")
    dir_read_base(DIRA, 1, 42)
    e(f"v_lshl_add_u32 v{DIRB}, v27, 12, v{DIRA}")
    e(f"v_add_u32 v{DIRB}, 8192, v{DIRB}")
    e(f"v_lshl_add_u32 v{DIRA}, v26, 12, v{DIRA}")
    e(f"v_xor_b32 v{DIRA + 1}, 64, v{DIRA}")
    e(f"v_xor_b32 v{DIRB + 1}, 64, v{DIRB}")
    ACC1, ACC2 = 48, 64
    FA, FB = 80, 96
    for i in range(32):
        e(f"v_mov_b32 v{ACC1 + i}, 0")
    e("s_mov_b32 s23, 0")

    def loop(part, n, acc):
        lab = f"K3_loop{part}"
        e("s_mov_b32 s24, 0")
        e(f"{lab}:")
        e(f"s_waitcnt vmcnt({4 * (P - 1)})")
        e("s_barrier")
        dirb, trb = (DIRA, TRB) if part == 1 else (DIRB, TRA)
        dfr, tfr = (FA, FB) if part == 1 else (FB, FA)
        for i in range(2):
            e(f"v_add_u32 v{CUR + i}, s23, v{dirb + i}")
            e(f"v_add_u32 v{CUR + 2 + i}, s23, v{trb + i}")

        def rd_dir(kk):
            for i in range(2):
                e(f"ds_read_b128 {vr(dfr + (kk * 2 + i) * 4, 4)}, v{CUR + kk} offset:{i * 2048}")

        def rd_tr(kk):
            for i in range(2):
                for h in range(2):
                    e(f"ds_read_b64_tr_b16 {vr(tfr + (kk * 2 + i) * 4 + 2 * h, 2)}, v{CUR + 2 + i} offset:{kk * 4096 + h * 512}")

        rd_dir(0)
        rd_tr(0)
        issue(f"l{part}")
        rd_dir(1)
        rd_tr(1)
        e("s_add_u32 s23, s23, 16384")
        e(f"s_and_b32 s23, s23, 0x{R * 16384 - 1:x}")
        e("s_waitcnt lgkmcnt(6)")
        for mt in range(2):
            for nt in range(2):
                mfma(acc + (mt * 2 + nt) * 4, FA + mt * 4, FB + nt * 4)
        e("s_waitcnt lgkmcnt(0)")
        for mt in range(2):
            for nt in range(2):
                mfma(acc + (mt * 2 + nt) * 4, FA + (2 + mt) * 4, FB + (2 + nt) * 4)
        e("s_add_u32 s24, s24, 1")
        e(f"s_cmp_lt_u32 s24, {n}")
        e(f"s_cbranch_scc1 {lab}")

    loop(1, N1, ACC1)
    loop(2, N2, ACC2)
    e("s_nop 7")
    e("s_nop 7")
    T = 112
    for nt in range(2):
        e(f"v_sub_f32 v{T + 12}, 1.0, v{GB + nt}")
        e(f"v_cvt_pk_bf16_f32 v{T + 12}, v{T + 12}, v{T + 12}")
        e(f"v_lshlrev_b32 v{T + 12}, 16, v{T + 12}")
        e(f"v_lshlrev_b32 v{T + 13}, 16, v{GB + 2 + nt}")
        for mt in range(2):
            a1 = ACC1 + (mt * 2 + nt) * 4
            a2 = ACC2 + (mt * 2 + nt) * 4
            e(f"v_cvt_pk_bf16_f32 v{T}, v{a1}, v{a1 + 1}")
            e(f"v_cvt_pk_bf16_f32 v{T + 1}, v{a1 + 2}, v{a1 + 3}")
            unpack(T + 2, T + 3, T)
            unpack(T + 4, T + 5, T + 1)
            for r in range(4):
                e(f"v_add_f32 v{T + 2 + r}, v{T + 2 + r}, v{T + 13}")
            e(f"v_cvt_pk_bf16_f32 v{T}, v{T + 2}, v{T + 3}")
            e(f"v_cvt_pk_bf16_f32 v{T + 1}, v{T + 4}, v{T + 5}")
            unpack(T + 2, T + 3, T)
            unpack(T + 4, T + 5, T + 1)
            for r in range(4):
                e(f"v_mul_f32 v{T + 2 + r}, v{T + 2 + r}, v{T + 12}")
            e(f"v_cvt_pk_bf16_f32 v{T}, v{T + 2}, v{T + 3}")
            e(f"v_cvt_pk_bf16_f32 v{T + 1}, v{T + 4}, v{T + 5}")
            unpack(T + 2, T + 3, T)
            unpack(T + 4, T + 5, T + 1)
            e(f"v_cvt_pk_bf16_f32 v{T}, v{a2}, v{a2 + 1}")
            e(f"v_cvt_pk_bf16_f32 v{T + 1}, v{a2 + 2}, v{a2 + 3}")
            unpack(T + 6, T + 7, T)
            unpack(T + 8, T + 9, T + 1)
            for r in range(4):
                e(f"v_mul_f32 v{T + 6 + r}, v{T + 6 + r}, v{GB + nt}")
            e(f"v_cvt_pk_bf16_f32 v{T}, v{T + 6}, v{T + 7}")
            e(f"v_cvt_pk_bf16_f32 v{T + 1}, v{T + 8}, v{T + 9}")
            unpack(T + 6, T + 7, T)
            unpack(T + 8, T + 9, T + 1)
            for r in range(4):
                e(f"v_add_f32 v{T + 2 + r}, v{T + 2 + r}, v{T + 6 + r}")
            o = T + 16 + (nt * 2 + mt) * 2
            e(f"v_cvt_pk_bf16_f32 v{o}, v{T + 2}, v{T + 3}")
            e(f"v_cvt_pk_bf16_f32 v{o + 1}, v{T + 4}, v{T + 5}")
            if nt == 0:
                e(f"buffer_store_dwordx2 {vr(o, 2)}, v24, s[12:15], 0 offen offset:{mt * 32}")
            else:
                e(f"v_add_u32 v25, {16 * 1024}, v24")
                e(f"buffer_store_dwordx2 {vr(o, 2)}, v25, s[12:15], 0 offen offset:{mt * 32}")
    e("K3_done:")
    e("s_endpgm")
    kernel_desc(name, 144)
    return name


def gen_k1():
    name = "gm_qkv_attn_kernel"
    R, P = 4, 3
    STG = 36864
    NST = D // 64
    BREG = 24576
    kernel_begin(name)
    e("s_cmp_ge_u32 s2, 256")
    e("s_cbranch_scc1 K1_done")
    e("s_load_dwordx4 s[40:43], s[0:1], 0")
    e("s_load_dwordx2 s[44:45], s[0:1], 64")
    e("s_load_dwordx2 s[50:51], s[0:1], 88")
    e("v_and_b32 v1, 63, v0")
    e("v_lshrrev_b32 v2, 6, v0")
    e("s_and_b32 s34, s2, 7")
    e("s_lshr_b32 s35, s2, 3")
    e("s_lshl_b32 s34, s34, 5")
    e("s_add_u32 s34, s34, s35")
    e("s_lshr_b32 s35, s34, 3")
    e("s_and_b32 s36, s34, 7")
    e("s_lshl_b32 s35, s35, 6")
    e("v_readfirstlane_b32 s25, v2")
    e("s_waitcnt lgkmcnt(0)")
    srd(4, 42, 43, D * 3 * D * 2)
    srd(8, 40, 41, S * D * 2)
    srd(12, 50, 51, S * D * 2, WS_H)
    srd(16, 50, 51, S * D * 2, WS_O)
    srd(60, 50, 51, S * 4, WS_G)
    srd(64, 44, 45, D * 2)
    LX = 100
    e("s_lshl_b32 s26, s34, 3")
    e("s_lshl_b32 s27, s25, 1")
    e("s_add_u32 s26, s26, s27")
    e("s_lshl_b32 s27, s26, 10")
    e("v_lshlrev_b32 v3, 4, v1")
    e("v_add_u32 v98, s27, v3")
    e(f"buffer_load_dwordx4 {vr(LX, 4)}, v98, s[8:11], 0 offen")
    e(f"buffer_load_dwordx4 {vr(LX + 4, 4)}, v98, s[8:11], 0 offen offset:1024")
    e(f"buffer_load_dwordx4 {vr(LX + 8, 4)}, v3, s[64:67], 0 offen")
    DA, DB = 4, 6
    e("v_lshrrev_b32 v12, 3, v1")
    e("v_and_b32 v13, 7, v1")
    e("v_bfe_u32 v14, v1, 4, 1")
    e("v_lshl_add_u32 v15, v2, 4, v12")
    e("s_lshl_b32 s26, s36, 7")
    for j in range(2):
        e(f"v_or_b32 v16, {2 * j}, v14")
        e("v_lshlrev_b32 v16, 1, v16")
        e("v_xor_b32 v16, v13, v16")
        e("v_lshlrev_b32 v16, 4, v16")
        e(f"v_add_u32 v17, {8 * j}, v15")
        e("s_movk_i32 s27, 3072")
        e("v_mul_lo_u32 v17, v17, s27")
        e(f"v_add3_u32 v{DA + j}, v17, v16, s26")
    e("v_mul_u32_u24 v15, 24, v2")
    e("v_add_u32 v15, v15, v12")
    for j in range(3):
        e(f"v_add_u32 v17, {8 * j}, v15")
        e("v_bfe_u32 v16, v17, 1, 3")
        e("v_xor_b32 v16, v13, v16")
        e("v_lshlrev_b32 v16, 4, v16")
        e("s_sub_u32 s27, s35, 16")
        e("v_add_u32 v18, s27, v17")
        e("v_max_i32 v18, 0, v18")
        e("v_lshl_add_u32 v18, v18, 10, v16")
        e("v_cmp_gt_u32 vcc, 80, v17")
        e(f"v_mov_b32 v19, 0x{BIG:x}")
        e("s_nop 0")
        e(f"v_cndmask_b32 v{DB + j}, v19, v18, vcc")
    e("s_lshl_b32 s22, s25, 11")
    e("s_mul_i32 s28, s25, 3072")
    e(f"s_add_u32 s28, s28, {BREG}")
    e("s_mov_b32 s20, 0")
    e("s_mov_b32 s21, 0")
    e("s_mov_b32 s29, 0")

    def issue():
        for X in range(3):
            for j in range(2):
                e("s_add_u32 s26, s22, s29")
                e(f"s_add_u32 m0, s26, {X * 7168 + j * 1024}")
                e("s_nop 0")
                e(f"buffer_load_dwordx4 v{DA + j}, s[4:7], s20 offen offset:{X * 1024} lds")
        for j in range(3):
            e("s_add_u32 s26, s28, s29")
            e(f"s_add_u32 m0, s26, {j * 1024}")
            e("s_nop 0")
            e(f"buffer_load_dwordx4 v{DB + j}, s[8:11], s21 offen lds")
        e(f"s_add_u32 s20, s20, {64 * 3072}")
        e("s_add_u32 s21, s21, 128")
        e(f"s_add_u32 s29, s29, {STG}")
        e(f"s_cmp_ge_u32 s29, {R * STG}")
        e("s_cselect_b32 s29, 0, s29")

    for _ in range(P):
        issue()
    e(f"s_waitcnt vmcnt({9 * P})")
    XF = 112
    GW = 128
    for j in range(4):
        unpack(GW + 2 * j, GW + 2 * j + 1, LX + 8 + j)
    e("s_mov_b32 s26, 0x3b000000")
    e("s_mov_b32 s27, 0x3727c5ac")
    e("s_mov_b32 s33, 0xbfb8aa3b")
    for row in range(2):
        x = XF + 8 * row
        for j in range(4):
            unpack(x + 2 * j, x + 2 * j + 1, LX + 4 * row + j)
        t = 136
        e(f"v_add_f32 v{t}, v{x}, v{x + 1}")
        for j in range(2, 8):
            e(f"v_add_f32 v{t}, v{t}, v{x + j}")
        wave_sum(t, 30)
        for j in range(4):
            e(f"v_mul_f32 v{t + 1}, v{x + 2 * j}, v{GW + 2 * j}")
            e(f"v_mul_f32 v{t + 2}, v{x + 2 * j + 1}, v{GW + 2 * j + 1}")
            e(f"v_cvt_pk_bf16_f32 v{t + 1}, v{t + 1}, v{t + 2}")
            unpack(t + 2, t + 3, t + 1)
            if j == 0:
                e(f"v_add_f32 v{t + 4}, v{t + 2}, v{t + 3}")
            else:
                e(f"v_add_f32 v{t + 4}, v{t + 4}, v{t + 2}")
                e(f"v_add_f32 v{t + 4}, v{t + 4}, v{t + 3}")
        wave_sum(t + 4, 31)
        e("s_nop 1")
        e(f"v_mov_b32 v{t}, s26")
        e(f"v_mul_f32 v{t}, s30, v{t}")
        e(f"v_mov_b32 v{t + 5}, 0")
        for j in range(8):
            e(f"v_sub_f32 v{t + 1}, v{x + j}, v{t}")
            e(f"v_fmac_f32 v{t + 5}, v{t + 1}, v{t + 1}")
        wave_sum(t + 5, 32)
        e("s_nop 1")
        e(f"v_mov_b32 v{t + 1}, s26")
        e(f"v_mul_f32 v{t + 1}, s32, v{t + 1}")
        e(f"v_cvt_pk_bf16_f32 v{t + 1}, v{t + 1}, v{t}")
        e(f"v_and_b32 v{t}, 0xffff0000, v{t + 1}")
        e(f"v_lshlrev_b32 v{t + 1}, 16, v{t + 1}")
        e(f"v_add_f32 v{t + 1}, s27, v{t + 1}")
        e(f"v_cvt_pk_bf16_f32 v{t + 1}, v{t + 1}, v{t + 1}")
        e(f"v_lshlrev_b32 v{t + 1}, 16, v{t + 1}")
        e(f"v_sqrt_f32 v{t + 1}, v{t + 1}")
        e("s_nop 0")
        e(f"v_cvt_pk_bf16_f32 v{t + 1}, v{t + 1}, v{t + 1}")
        e(f"v_lshlrev_b32 v{t + 1}, 16, v{t + 1}")
        e(f"v_rcp_f32 v{t + 1}, v{t + 1}")
        e("s_nop 0")
        ho = 144 + 4 * row
        for j in range(4):
            e(f"v_sub_f32 v{t + 2}, v{x + 2 * j}, v{t}")
            e(f"v_sub_f32 v{t + 3}, v{x + 2 * j + 1}, v{t}")
            e(f"v_cvt_pk_bf16_f32 v{t + 2}, v{t + 2}, v{t + 3}")
            unpack(t + 3, t + 4, t + 2)
            e(f"v_mul_f32 v{t + 3}, v{t + 3}, v{t + 1}")
            e(f"v_mul_f32 v{t + 4}, v{t + 4}, v{t + 1}")
            e(f"v_cvt_pk_bf16_f32 v{ho + j}, v{t + 3}, v{t + 4}")
        e(f"buffer_store_dwordx4 {vr(ho, 4)}, v98, s[12:15], 0 offen offset:{row * 1024}")
        e(f"v_mov_b32 v{t + 2}, s31")
        e(f"v_cvt_pk_bf16_f32 v{t + 2}, v{t + 2}, v{t + 2}")
        e(f"v_lshlrev_b32 v{t + 2}, 16, v{t + 2}")
        e(f"v_mul_f32 v{t + 2}, s33, v{t + 2}")
        e(f"v_exp_f32 v{t + 2}, v{t + 2}")
        e("s_nop 0")
        e(f"v_add_f32 v{t + 2}, 1.0, v{t + 2}")
        e(f"v_rcp_f32 v{t + 2}, v{t + 2}")
        e("s_nop 0")
        e(f"v_cvt_pk_bf16_f32 v{t + 2}, v{t + 2}, v{t + 2}")
        e(f"v_lshlrev_b32 v{152 + row}, 16, v{t + 2}")
        e(f"v_lshrrev_b32 v{t + 3}, 8, v98")
        e("s_mov_b64 exec, 1")
        e(f"buffer_store_dword v{152 + row}, v{t + 3}, s[60:63], 0 offen offset:{row * 4}")
        e("s_mov_b64 exec, -1")
    TRA, DIRB = 20, 22
    CUR = 24
    tr_read_base(TRA, 1, "v2", 30)
    dir_read_base(DIRB, 1, 30)
    e(f"v_add_u32 v{DIRB}, {BREG}, v{DIRB}")
    e(f"v_xor_b32 v{DIRB + 1}, 64, v{DIRB}")
    ACC = 160
    FA, FB = 32, 56
    for X in range(3):
        for nt in range(5):
            if X == 0 and nt == 0:
                continue
            for r in range(4):
                e(f"v_mov_b32 v{ACC + (X * 5 + nt) * 4 + r}, 0")
    e("s_mov_b32 s23, 0")
    e("s_mov_b32 s24, 0")
    e("K1_loop:")
    e(f"s_waitcnt vmcnt({9 * (P - 1)})")
    e("s_barrier")
    e(f"v_add_u32 v{CUR}, s23, v{TRA}")
    e(f"v_add_u32 v{CUR + 1}, s23, v{DIRB}")
    e(f"v_add_u32 v{CUR + 2}, s23, v{DIRB + 1}")

    def rd_a(kk):
        for X in range(3):
            for h in range(2):
                e(f"ds_read_b64_tr_b16 {vr(FA + (kk * 3 + X) * 4 + 2 * h, 2)}, v{CUR} offset:{X * 8192 + kk * 4096 + h * 512}")

    def rd_b(kk, nts):
        for nt in nts:
            e(f"ds_read_b128 {vr(FB + (kk * 5 + nt) * 4, 4)}, v{CUR + 1 + kk} offset:{nt * 2048}")

    rd_a(0)
    rd_b(0, range(5))
    issue()
    rd_b(1, range(4))
    e("s_waitcnt lgkmcnt(4)")
    first = True
    for nt in range(5):
        for X in range(3):
            if X == 0 and nt == 0:
                continue
            mfma(ACC + (X * 5 + nt) * 4, FA + X * 4, FB + nt * 4)
            if first:
                rd_b(1, [4])
                rd_a(1)
                first = False
    e(f"s_add_u32 s23, s23, {STG}")
    e(f"s_cmp_ge_u32 s23, {R * STG}")
    e("s_cselect_b32 s23, 0, s23")
    e("s_waitcnt lgkmcnt(0)")
    for nt in range(5):
        for X in range(3):
            if X == 0 and nt == 0:
                continue
            mfma(ACC + (X * 5 + nt) * 4, FA + (3 + X) * 4, FB + (5 + nt) * 4)
    e("s_add_u32 s24, s24, 1")
    e(f"s_cmp_lt_u32 s24, {NST}")
    e("s_cbranch_scc1 K1_loop")
    e("s_waitcnt vmcnt(0)")
    e("s_barrier")
    QR, KR, VRG = 0, 2048, 4608
    e("v_and_b32 v3, 15, v1")
    e("v_lshrrev_b32 v9, 4, v1")
    e("v_lshlrev_b32 v10, 4, v3")
    e("v_and_b32 v11, 1, v9")
    e("v_lshl_add_u32 v10, v11, 3, v10")
    e("v_lshl_add_u32 v10, v2, 13, v10")
    e("v_lshrrev_b32 v11, 1, v9")
    e("v_lshl_add_u32 v12, v11, 10, v10")
    e("v_mul_u32_u24 v11, 1280, v11")
    e("v_add_u32 v13, v11, v10")
    e("s_nop 7")
    for X in range(3):
        for nt in range(5):
            if X == 0 and nt == 0:
                continue
            a = ACC + (X * 5 + nt) * 4
            e(f"v_cvt_pk_bf16_f32 v14, v{a}, v{a + 1}")
            e(f"v_cvt_pk_bf16_f32 v15, v{a + 2}, v{a + 3}")
            if X == 0:
                e(f"ds_write_b64 v12, v[14:15] offset:{QR + (nt - 1) * 256}")
            else:
                e(f"ds_write_b64 v13, v[14:15] offset:{(KR if X == 1 else VRG) + nt * 256}")
    e("v_lshlrev_b32 v10, 4, v1")
    e("v_lshl_add_u32 v10, v2, 13, v10")
    e("s_waitcnt lgkmcnt(0)")
    Q, KK, VV = 32, 40, 104
    for p in range(2):
        e(f"ds_read_b128 {vr(Q + 4 * p, 4)}, v10 offset:{QR + p * 1024}")
    for w in range(8):
        for p in range(2):
            e(f"ds_read_b128 {vr(KK + 8 * w + 4 * p, 4)}, v10 offset:{KR + p * 1280 + (16 - 2 * w) * 16}")
        if w == 5:
            e("s_waitcnt lgkmcnt(8)")
    e("s_waitcnt lgkmcnt(0)")
    for w in range(8):
        for p in range(2):
            e(f"ds_read_b128 {vr(VV + 8 * w + 4 * p, 4)}, v10 offset:{VRG + p * 1280 + (16 - 2 * w) * 16}")
        if w == 5:
            e("s_waitcnt lgkmcnt(8)")
    LG = 168
    for w in range(8):
        e(f"v_mov_b32 v{LG + w}, 0")
    for j in range(8):
        for w in range(8):
            e(f"v_dot2_f32_bf16 v{LG + w}, v{Q + j}, v{KK + 8 * w + j}, v{LG + w}")
    e("s_nop 3")
    e("v_add_u32 v11, s35, v1")
    e("v_mov_b32 v12, 0xce6e0000")
    for u in range(4):
        e(f"v_cvt_pk_bf16_f32 v14, v{LG + 2 * u}, v{LG + 2 * u + 1}")
        unpack(LG + 2 * u, LG + 2 * u + 1, 14)
    for w in range(8):
        e(f"v_mul_f32 v{LG + w}, 0.25, v{LG + w}") if False else e(f"v_mul_f32 v{LG + w}, 0x3e800000, v{LG + w}")
    for w in range(1, 8):
        e(f"v_cmp_le_u32 vcc, {2 * w}, v11")
        e("s_nop 1")
        e(f"v_cndmask_b32 v{LG + w}, v12, v{LG + w}, vcc")
    e(f"v_max3_f32 v13, v{LG}, v{LG + 1}, v{LG + 2}")
    e(f"v_max3_f32 v13, v13, v{LG + 3}, v{LG + 4}")
    e(f"v_max3_f32 v13, v13, v{LG + 5}, v{LG + 6}")
    e(f"v_max_f32 v13, v13, v{LG + 7}")
    e("s_mov_b32 s26, 0x3fb8aa3b")
    for w in range(8):
        e(f"v_sub_f32 v{LG + w}, v{LG + w}, v13")
        e(f"v_mul_f32 v{LG + w}, s26, v{LG + w}")
        e(f"v_exp_f32 v{LG + w}, v{LG + w}")
    e("s_nop 0")
    e(f"v_add_f32 v13, v{LG}, v{LG + 1}")
    for w in range(2, 8):
        e(f"v_add_f32 v13, v13, v{LG + w}")
    e("v_rcp_f32 v13, v13")
    e("s_nop 0")
    for w in range(8):
        e(f"v_mul_f32 v{LG + w}, v{LG + w}, v13")
    PP = 176
    for u in range(4):
        e(f"v_cvt_pk_bf16_f32 v{PP + u}, v{LG + 2 * u}, v{LG + 2 * u + 1}")
    OA = 180
    for j in range(16):
        e(f"v_mov_b32 v{OA + j}, 0")
    e("s_mov_b32 s26, 0x05040100")
    e("s_mov_b32 s27, 0x07060302")
    e("s_waitcnt lgkmcnt(0)")
    TT = 196
    for u in range(4):
        for j in range(8):
            a = VV + 8 * (2 * u) + j
            b = VV + 8 * (2 * u + 1) + j
            e(f"v_perm_b32 v{TT + 2 * j}, v{b}, v{a}, s26")
            e(f"v_perm_b32 v{TT + 2 * j + 1}, v{b}, v{a}, s27")
        for j in range(16):
            e(f"v_dot2_f32_bf16 v{OA + j}, v{TT + j}, v{PP + u}, v{OA + j}")
    e("s_nop 3")
    for j in range(8):
        e(f"v_cvt_pk_bf16_f32 v{TT + j}, v{OA + 2 * j}, v{OA + 2 * j + 1}")
    e("v_lshlrev_b32 v11, 10, v11")
    e("s_lshl_b32 s26, s36, 7")
    e("s_lshl_b32 s27, s25, 5")
    e("s_add_u32 s26, s26, s27")
    e("v_add_u32 v11, s26, v11")
    e(f"buffer_store_dwordx4 {vr(TT, 4)}, v11, s[16:19], 0 offen")
    e(f"buffer_store_dwordx4 {vr(TT + 4, 4)}, v11, s[16:19], 0 offen offset:16")
    e("K1_done:")
    e("s_endpgm")
    kernel_desc(name, 224)
    return name


def main():
    hdr = [
        "; Gated mix of dilated sliding-window attention and MLP-Mixer token mixing (gfx950).",
        "; Generated by gen/gen.py.  Workspace: h @0, o @2MiB, u @4MiB, g @6MiB.",
        "; @launch kernel=gm_qkv_attn_kernel grid=(256,1,1) block=(256,1,1) lds=147456",
        "; @launch kernel=gm_gemm1_kernel grid=(224,1,1) block=(256,1,1) lds=131072",
        "; @launch kernel=gm_gemm2_kernel grid=(256,1,1) block=(256,1,1) lds=131072",
        '.amdgcn_target "amdgcn-amd-amdhsa--gfx950"',
    ]
    gen_k1()
    gen_k2()
    gen_k3()
    txt = "\n".join(hdr + [l for l in out if l.strip() != ""]) + "\n"
    path = sys.argv[1] if len(sys.argv) > 1 else f"cdna_kernels/{NAME}.s"
    open(path, "w").write(txt)


if __name__ == "__main__":
    main()
```

```python
import os
import sys

EXP = os.environ.get("EXP", "")

NAME = "gated_mix__sliding_local_dilated__mixer_token_mlp__prompt"

S, D, F = 2048, 512, 1792
WS_H = 0
WS_O = 2 << 20
WS_U = 4 << 20
WS_G = 6 << 20
BIG = 0x7FFF0000

out = []


def e(s=""):
    out.append("    " + s if s and not s.endswith(":") else s)


def c(s):
    out.append("    ; " + s)


def vr(b, n):
    return f"v[{b}:{b + n - 1}]"


def sr(b, n):
    return f"s[{b}:{b + n - 1}]"


def srd(dst, base_lo, base_hi, nbytes, add=0):
    if add:
        e(f"s_add_u32 s{dst}, s{base_lo}, 0x{add:x}")
        e(f"s_addc_u32 s{dst + 1}, s{base_hi}, 0")
    else:
        e(f"s_mov_b32 s{dst}, s{base_lo}")
        e(f"s_mov_b32 s{dst + 1}, s{base_hi}")
    e(f"s_and_b32 s{dst + 1}, s{dst + 1}, 0xffff")
    e(f"s_mov_b32 s{dst + 2}, 0x{nbytes:x}")
    e(f"s_mov_b32 s{dst + 3}, 0x00020000")


def kernel_begin(name):
    e(".text")
    e(f".globl {name}")
    e(".p2align 8")
    e(f".type {name},@function")
    e(f"{name}:")


def kernel_desc(name, nvgpr, nsgpr=102):
    acc = (nvgpr + 3) // 4 * 4
    e('.section .rodata,"a"')
    e(".p2align 6")
    e(f".amdhsa_kernel {name}")
    e(f"  .amdhsa_next_free_vgpr {nvgpr}")
    e(f"  .amdhsa_next_free_sgpr {nsgpr}")
    e(f"  .amdhsa_accum_offset {acc}")
    e("  .amdhsa_group_segment_fixed_size 0")
    e("  .amdhsa_kernarg_size 96")
    e("  .amdhsa_user_sgpr_count 2")
    e("  .amdhsa_user_sgpr_kernarg_segment_ptr 1")
    e("  .amdhsa_system_sgpr_workgroup_id_x 1")
    e(".end_amdhsa_kernel")


def mfma(d, a, b):
    e(f"v_mfma_f32_16x16x32_bf16 {vr(d, 4)}, {vr(a, 4)}, {vr(b, 4)}, {vr(d, 4)}")


def unpack(lo, hi, src):
    e(f"v_lshlrev_b32 v{lo}, 16, v{src}")
    e(f"v_and_b32 v{hi}, 0xffff0000, v{src}")


def wave_sum(v, sdst):
    for sh in (1, 2, 4, 8):
        e("s_nop 1")
        e(f"v_add_f32_dpp v{v}, v{v}, v{v} row_shr:{sh} row_mask:0xf bank_mask:0xf bound_ctrl:0")
    e("s_nop 1")
    e(f"v_add_f32_dpp v{v}, v{v}, v{v} row_bcast:15 row_mask:0xa bank_mask:0xf")
    e("s_nop 1")
    e(f"v_add_f32_dpp v{v}, v{v}, v{v} row_bcast:31 row_mask:0xc bank_mask:0xf")
    e("s_nop 1")
    e(f"v_readlane_b32 s{sdst}, v{v}, 63")


def lane_fields(vl, vg, vr_, vc4, vt):
    e(f"v_lshrrev_b32 v{vg}, 4, v{vl}")
    e(f"v_bfe_u32 v{vr_}, v{vl}, 2, 2")
    e(f"v_and_b32 v{vc4}, 3, v{vl}")


def tr_read_base(vdst, vl, tile, tmp):
    g, r, c4, f = tmp, tmp + 1, tmp + 2, tmp + 3
    lane_fields(vl, g, r, c4, None)
    e(f"v_lshrrev_b32 v{f}, 1, v{r}")
    e(f"v_and_b32 v{vdst}, 1, v{g}")
    e(f"v_lshl_or_b32 v{f}, v{vdst}, 1, v{f}")
    if isinstance(tile, int):
        e(f"v_xor_b32 v{f}, {tile}, v{f}")
    else:
        e(f"v_xor_b32 v{f}, {tile}, v{f}")
    e(f"v_lshlrev_b32 v{f}, 5, v{f}")
    e(f"v_lshl_add_u32 v{vdst}, v{g}, 3, v{r}")
    e(f"v_lshlrev_b32 v{vdst}, 7, v{vdst}")
    e(f"v_add_u32 v{vdst}, v{vdst}, v{f}")
    e(f"v_lshl_add_u32 v{vdst}, v{c4}, 3, v{vdst}")


def dir_read_base(vdst, vl, tmp):
    n, g = tmp, tmp + 1
    e(f"v_and_b32 v{n}, 15, v{vl}")
    e(f"v_lshrrev_b32 v{g}, 4, v{vl}")
    e(f"v_lshrrev_b32 v{vdst}, 1, v{n}")
    e(f"v_xor_b32 v{vdst}, v{vdst}, v{g}")
    e(f"v_lshlrev_b32 v{vdst}, 4, v{vdst}")
    e(f"v_lshl_add_u32 v{vdst}, v{n}, 7, v{vdst}")


def gelu(x, t, k1s, k2s):
    e(f"v_mul_f32 v{t}, v{x}, v{x}")
    e(f"v_mov_b32 v{t + 1}, s{k1s}")
    e(f"v_fma_f32 v{t}, v{t}, s{k2s}, v{t + 1}")
    e(f"v_mul_f32 v{t}, v{t}, v{x}")
    e(f"v_exp_f32 v{t}, -v{t}")
    e("s_nop 0")
    e(f"v_add_f32 v{t}, 1.0, v{t}")
    e(f"v_rcp_f32 v{t}, v{t}")
    e("s_nop 0")
    e(f"v_mul_f32 v{x}, v{x}, v{t}")
```

```python
import os
import sys

sys.path.insert(0, os.path.dirname(os.path.abspath(__file__)))
from common import *
import common

EXP = os.environ.get("EXP", "")


def producer_loop(tag, NST, R, ND, issue, D=None, D0=2, tail=None):
    D = R - 1 if D is None else D
    assert D <= R - 1
    steps = []
    issued = 0
    for b in range(NST + 1):
        n = 0
        lim = min(NST, b + min(D, D0 + b))
        while issued < lim:
            issued += 1
            n += 1
        steps.append((n, ND * max(issued - b - 1, 0)))
    i = 0
    while i < len(steps):
        j = i
        while j + 1 < len(steps) and steps[j + 1] == steps[i]:
            j += 1
        cnt = j - i + 1
        n, vm = steps[i]
        if cnt >= 3 and n >= 1:
            e("s_mov_b32 s24, 0")
            e(f"{tag}_ploop{i}:")
            for _ in range(n):
                issue()
            e(f"s_waitcnt vmcnt({vm})")
            e("s_barrier")
            e("s_add_u32 s24, s24, 1")
            e(f"s_cmp_lt_u32 s24, {cnt}")
            e(f"s_cbranch_scc1 {tag}_ploop{i}")
        else:
            for _ in range(cnt):
                for _ in range(n):
                    issue()
                e(f"s_waitcnt vmcnt({vm})")
                e("s_barrier")
        i = j + 1
    if tail:
        tail()
    e("s_endpgm")


STAMP = os.environ.get("STAMP", "")
_stamps = []


CURK = [""]


def stamp(k):
    if STAMP != CURK[0]:
        return
    e("s_memrealtime s[96:97]" if os.environ.get("RT") else "s_memtime s[96:97]")
    e("s_waitcnt lgkmcnt(0)")
    e(f"s_mov_b32 s{80 + k}, s96")


def stamp_dump(n, wsreg):
    if STAMP != CURK[0]:
        return
    e(f"s_add_u32 s92, s{wsreg}, 0x1000000")
    e(f"s_addc_u32 s93, s{wsreg + 1}, 0")
    e("s_and_b32 s93, s93, 0xffff")
    e("s_mov_b32 s94, 0x100000")
    e("s_mov_b32 s95, 0x00020000")
    e("v_lshrrev_b32 v250, 6, v0")
    e("s_lshl_b32 s98, s2, 3")
    e("v_add_u32 v250, s98, v250")
    e("v_lshlrev_b32 v250, 6, v250")
    e("s_mov_b64 exec, 1")
    for k in range(n):
        e(f"v_mov_b32 v251, s{80 + k}")
        e(f"buffer_store_dword v251, v250, s[92:95], 0 offen offset:{4 * k}")
    e("s_mov_b64 exec, -1")


def interleave(mf, rd):
    n, m = len(mf), len(rd)
    k = 0
    for i, f in enumerate(mf):
        want = (m * (i + 1) + n - 1) // n
        while k < want:
            rd[k]()
            k += 1
        f()
    while k < m:
        rd[k]()
        k += 1


def gen_k2():
    name = "gm_gemm1_kernel"
    CURK[0] = "2"
    R = 8
    NST = S // 64
    kernel_begin(name)
    e("s_cmp_ge_u32 s2, 224")
    e("s_cbranch_scc1 K2_done")
    e("s_load_dwordx4 s[28:31], s[0:1], 32")
    e("s_load_dwordx2 s[32:33], s[0:1], 88")
    e("s_load_dwordx2 s[52:53], s[0:1], 16")
    e("s_load_dwordx2 s[56:57], s[0:1], 48")
    e("v_and_b32 v1, 63, v0")
    e("v_bfe_u32 v2, v0, 6, 2")
    e("v_lshrrev_b32 v3, 8, v0")
    e("s_and_b32 s34, s2, 7")
    e("s_lshr_b32 s35, s2, 3")
    e("s_mul_i32 s34, s34, 28")
    e("s_add_u32 s34, s34, s35")
    e("s_lshr_b32 s35, s34, 3")
    e("s_and_b32 s36, s34, 7")
    e("s_lshl_b32 s35, s35, 7")
    e("s_lshl_b32 s36, s36, 7")
    e("v_readfirstlane_b32 s25, v2")
    e("v_readfirstlane_b32 s27, v3")
    e("s_waitcnt lgkmcnt(0)")
    stamp(0)
    e("s_cmp_eq_u32 s27, 0")
    e("s_cbranch_scc1 K2_consumer")
    srd(4, 28, 29, S * F * 2)
    srd(8, 32, 33, S * D * 2, WS_H)
    DA, DB = 4, 6
    e("v_lshrrev_b32 v8, 3, v1")
    e("v_lshl_add_u32 v8, v2, 4, v8")
    e("v_and_b32 v9, 7, v1")
    e("v_bfe_u32 v10, v1, 4, 1")
    for j in range(2):
        e(f"v_or_b32 v11, {2 * j}, v10")
        e("v_lshlrev_b32 v11, 1, v11")
        e("v_xor_b32 v11, v9, v11")
        e("v_lshlrev_b32 v11, 4, v11")
        e(f"v_add_u32 v12, {8 * j}, v8")
        e("s_movk_i32 s26, 3584")
        e("v_mul_lo_u32 v13, v12, s26")
        e(f"v_add3_u32 v{DA + j}, v13, v11, s35")
        e("v_lshlrev_b32 v13, 10, v12")
        e(f"v_add3_u32 v{DB + j}, v13, v11, s36")
    e("s_lshl_b32 s22, s25, 11")
    e("s_and_b32 s26, s34, 7")
    e("s_lshl_b32 s26, s26, 2")
    e("s_bfe_u32 s27, s34, 0x20003")
    e("s_add_u32 s26, s26, s27")
    if os.environ.get("NOROT"):
        e("s_mov_b32 s26, 0")
    e(f"s_mul_i32 s20, s26, {64 * 3584}")
    e("s_lshl_b32 s21, s26, 16")

    def issue():
        for (vo, sd, so, reg) in ((DA, 4, 20, 0), (DB, 8, 21, 8192)):
            for j in range(2):
                e(f"s_add_u32 m0, s22, {reg + j * 1024}")
                e("s_nop 0")
                e(f"buffer_load_dwordx4 v{vo + j}, {sr(sd, 4)}, s{so} offen lds")
        e(f"s_add_u32 s20, s20, {64 * 3584}")
        e(f"s_add_u32 s21, s21, {64 * 1024}")
        e(f"s_cmp_ge_u32 s21, {S * 1024}")
        e("s_cselect_b32 s20, 0, s20")
        e("s_cselect_b32 s21, 0, s21")
        e("s_add_u32 s22, s22, 16384")
        e(f"s_and_b32 s22, s22, 0x{R * 16384 - 1:x}")

    producer_loop("K2", NST, R, 4, issue, D=int(os.environ.get("D2", 7)))
    e("K2_consumer:")
    srd(12, 32, 33, D * F * 2, WS_U)
    srd(16, 30, 31, F * 2)
    B1 = 14
    e("v_and_b32 v26, 1, v2")
    e("v_lshrrev_b32 v27, 1, v2")
    e("v_lshrrev_b32 v9, 4, v1")
    e("v_lshlrev_b32 v9, 3, v9")
    e("v_lshl_add_u32 v9, v26, 6, v9")
    e("v_add_u32 v9, s35, v9")
    e(f"buffer_load_dwordx2 {vr(B1, 2)}, v9, s[16:19], 0 offen")
    e(f"buffer_load_dwordx2 {vr(B1 + 2, 2)}, v9, s[16:19], 0 offen offset:32")
    srd(72, 56, 57, F * S * 2)
    srd(76, 52, 53, D * D * 2)
    e("s_lshl_b32 s26, s34, 15")
    e("s_lshl_b32 s27, s25, 13")
    e("s_add_u32 s26, s26, s27")
    e("v_lshlrev_b32 v121, 6, v1")
    e("v_add_u32 v121, s26, v121")
    e("v_add_u32 v120, 4096, v121")
    e("buffer_load_dword v122, v121, s[72:75], 0 offen")
    e("buffer_load_dword v122, v120, s[72:75], 0 offen")
    e("s_mul_i32 s26, s34, 2368")
    e("v_lshlrev_b32 v120, 6, v1")
    e("v_add_u32 v120, s26, v120")
    e("buffer_load_dword v122, v120, s[76:79], 0 offen")
    RA, RB = 18, 20
    CA, CB = 22, 24
    for i in range(2):
        e(f"v_lshl_add_u32 v28, v26, 1, {i}")
        tr_read_base(RA + i, 1, "v28", 30)
        e(f"v_lshl_add_u32 v28, v27, 1, {i}")
        tr_read_base(RB + i, 1, "v28", 30)
        e(f"v_add_u32 v{RB + i}, 8192, v{RB + i}")
    ACC = 40
    FS = (56, 88)
    for i in range(16):
        e(f"v_mov_b32 v{ACC + i}, 0")
    e("s_mov_b32 s23, 0")

    def addr_update():
        for i in range(2):
            e(f"v_add_u32 v{CA + i}, s23, v{RA + i}")
            e(f"v_add_u32 v{CB + i}, s23, v{RB + i}")
        e("s_add_u32 s23, s23, 16384")
        e(f"s_and_b32 s23, s23, 0x{R * 16384 - 1:x}")

    def reads(st):
        L = []
        for kk in range(2):
            for (cur, fo) in ((CA, 0), (CB, 16)):
                for i in range(2):
                    for h in range(2):
                        L.append(lambda kk=kk, cur=cur, fo=fo, i=i, h=h: e(
                            f"ds_read_b64_tr_b16 {vr(FS[st] + fo + (kk * 2 + i) * 4 + 2 * h, 2)}, v{cur + i} offset:{kk * 4096 + h * 512}"))
        return L

    def mfmas(st):
        L = []
        for kk in range(2):
            for mt in range(2):
                for nt in range(2):
                    L.append(lambda kk=kk, mt=mt, nt=nt: mfma(ACC + (mt * 2 + nt) * 4, FS[st] + (kk * 2 + mt) * 4,
                                                              FS[st] + 16 + (kk * 2 + nt) * 4))
        return L

    def half(st, do_reads=True):
        e("s_barrier")
        if do_reads:
            addr_update()
            interleave(mfmas(st), reads(1 - st))
            e("s_waitcnt lgkmcnt(0)")
        else:
            for f in mfmas(st):
                f()

    stamp(1)
    e("s_barrier")
    stamp(2)
    addr_update()
    for f in reads(0):
        f()
    e("s_waitcnt lgkmcnt(0)")
    e("s_mov_b32 s24, 0")
    e("K2_loop:")
    half(0)
    half(1)
    e("s_add_u32 s24, s24, 1")
    e(f"s_cmp_lt_u32 s24, {NST // 2 - 1}")
    e("s_cbranch_scc1 K2_loop")
    half(0)
    half(1, False)
    stamp(3)
    e("s_mov_b32 s26, 0x40135761")
    e("s_mov_b32 s27, 0x3dd2d3e8")
    e("v_and_b32 v8, 15, v1")
    e("v_lshl_add_u32 v8, v27, 5, v8")
    e("s_lshr_b32 s37, s36, 1")
    e("v_add_u32 v8, s37, v8")
    e("s_movk_i32 s37, 3584")
    e("v_mul_lo_u32 v8, v8, s37")
    e("v_lshrrev_b32 v9, 4, v1")
    e("v_lshlrev_b32 v9, 3, v9")
    e("v_lshl_add_u32 v9, v26, 6, v9")
    e("v_add3_u32 v8, v8, v9, s35")
    e(f"v_add_u32 v9, {16 * 3584}, v8")
    e("s_waitcnt vmcnt(3)")
    e("s_nop 7")
    T = 56
    for mt in range(2):
        unpack(T + 8, T + 9, B1 + 2 * mt)
        unpack(T + 10, T + 11, B1 + 2 * mt + 1)
        for nt in range(2):
            a = ACC + (mt * 2 + nt) * 4
            e(f"v_cvt_pk_bf16_f32 v{T}, v{a}, v{a + 1}")
            e(f"v_cvt_pk_bf16_f32 v{T + 1}, v{a + 2}, v{a + 3}")
            unpack(T + 2, T + 3, T)
            unpack(T + 4, T + 5, T + 1)
            for r in range(4):
                e(f"v_add_f32 v{T + 2 + r}, v{T + 2 + r}, v{T + 8 + r}")
            e(f"v_cvt_pk_bf16_f32 v{T}, v{T + 2}, v{T + 3}")
            e(f"v_cvt_pk_bf16_f32 v{T + 1}, v{T + 4}, v{T + 5}")
            unpack(T + 2, T + 3, T)
            unpack(T + 4, T + 5, T + 1)
            for r in range(4):
                gelu(T + 2 + r, T + 6, 26, 27)
            o = T + 12 + (mt * 2 + nt) * 2
            e(f"v_cvt_pk_bf16_f32 v{o}, v{T + 2}, v{T + 3}")
            e(f"v_cvt_pk_bf16_f32 v{o + 1}, v{T + 4}, v{T + 5}")
            e(f"buffer_store_dwordx2 {vr(o, 2)}, v{8 + nt}, s[12:15], 0 offen offset:{mt * 32}")
    e("s_waitcnt vmcnt(0)" if STAMP == "2" else "")
    stamp(4)
    stamp_dump(5, 32)
    e("K2_done:")
    e("s_endpgm")
    kernel_desc(name, 252 if STAMP else 124)
    return name


def gen_k3():
    name = "gm_gemm2_kernel"
    CURK[0] = "3"
    R = 8
    N1, N2 = F // 64, D // 64
    NST = N1 + N2
    kernel_begin(name)
    e("s_cmp_ge_u32 s2, 256")
    e("s_cbranch_scc1 K3_done")
    e("s_load_dwordx2 s[40:41], s[0:1], 16")
    e("s_load_dwordx4 s[44:47], s[0:1], 48")
    e("s_load_dwordx2 s[48:49], s[0:1], 72")
    e("s_load_dwordx2 s[50:51], s[0:1], 88")
    e("v_and_b32 v1, 63, v0")
    e("v_bfe_u32 v2, v0, 6, 2")
    e("v_lshrrev_b32 v3, 8, v0")
    e("s_and_b32 s34, s2, 7")
    e("s_lshr_b32 s35, s2, 3")
    e("s_lshl_b32 s34, s34, 5")
    e("s_add_u32 s34, s34, s35")
    e("s_lshr_b32 s35, s34, 3")
    e("s_and_b32 s36, s34, 7")
    e("s_lshl_b32 s35, s35, 6")
    e("s_lshl_b32 s36, s36, 6")
    e("v_readfirstlane_b32 s25, v2")
    e("v_readfirstlane_b32 s27, v3")
    e("s_waitcnt lgkmcnt(0)")
    e("s_cmp_eq_u32 s27, 0")
    e("s_cbranch_scc1 K3_consumer")
    srd(4, 50, 51, D * F * 2, WS_U)
    srd(8, 44, 45, F * S * 2)
    srd(60, 40, 41, D * D * 2)
    srd(64, 50, 51, S * D * 2, WS_O)
    DA, DB, DA2, DB2 = 4, 6, 8, 10
    e("v_lshrrev_b32 v12, 3, v1")
    e("v_lshl_add_u32 v12, v2, 4, v12")
    e("v_and_b32 v13, 7, v1")
    e("v_bfe_u32 v14, v1, 4, 1")
    for j in range(2):
        e(f"v_add_u32 v16, {8 * j}, v12")
        e(f"v_or_b32 v15, {2 * j}, v14")
        e("v_lshlrev_b32 v15, 1, v15")
        e("v_xor_b32 v15, v13, v15")
        e("v_lshlrev_b32 v15, 4, v15")
        e("v_bfe_u32 v17, v16, 1, 3")
        e("v_xor_b32 v17, v13, v17")
        e("v_lshlrev_b32 v17, 4, v17")
        e("v_add_u32 v18, s36, v16")
        e("s_movk_i32 s26, 3584")
        e("v_mul_lo_u32 v18, v18, s26")
        e(f"v_add_u32 v{DA + j}, v18, v17")
        e("v_lshlrev_b32 v18, 12, v16")
        e("s_lshl_b32 s26, s35, 1")
        e(f"v_add3_u32 v{DB + j}, v18, v15, s26")
        e("v_lshlrev_b32 v18, 10, v16")
        e("s_lshl_b32 s26, s36, 1")
        e(f"v_add3_u32 v{DA2 + j}, v18, v15, s26")
        e("v_add_u32 v18, s35, v16")
        e("v_lshlrev_b32 v18, 10, v18")
        e(f"v_add_u32 v{DB2 + j}, v18, v17")
    e("s_lshl_b32 s22, s25, 11")
    e("s_and_b32 s26, s34, 7")
    e("s_mul_i32 s27, s26, 3")
    e("s_bfe_u32 s28, s34, 0x20003")
    e("s_add_u32 s27, s27, s28")
    if os.environ.get("NOROT"):
        e("s_mov_b32 s26, 0")
        e("s_mov_b32 s27, 0")
    e("s_lshl_b32 s20, s27, 7")
    e("s_lshl_b32 s21, s27, 18")
    e("s_lshl_b32 s28, s26, 16")
    e("s_lshl_b32 s29, s26, 7")
    e("s_movk_i32 s38, 128")
    e(f"s_mov_b32 s39, {64 * 4096}")
    e(f"s_movk_i32 s30, {F * 2}")
    e("s_mov_b32 s37, 0")
    cnt = [0]

    def issue():
        tag = cnt[0]
        cnt[0] += 1
        e(f"s_cmp_lg_u32 s37, {N1}")
        e(f"s_cbranch_scc1 K3_noswap{tag}")
        for k in range(4):
            e(f"s_mov_b32 s{4 + k}, s{60 + k}")
            e(f"s_mov_b32 s{8 + k}, s{64 + k}")
        for k in range(4):
            e(f"v_mov_b32 v{DA + k}, v{DA2 + k}")
        e("s_mov_b32 s20, s28")
        e("s_mov_b32 s21, s29")
        e(f"s_mov_b32 s38, {64 * 1024}")
        e("s_movk_i32 s39, 128")
        e(f"s_mov_b32 s30, {D * 1024}")
        e(f"K3_noswap{tag}:")
        for (vo, sd, so, reg) in ((DA, 4, 20, 0), (DB, 8, 21, 8192)):
            for j in range(2):
                e(f"s_add_u32 m0, s22, {reg + j * 1024}")
                e("s_nop 0")
                e(f"buffer_load_dwordx4 v{vo + j}, {sr(sd, 4)}, s{so} offen lds")
        e("s_add_u32 s20, s20, s38")
        e("s_add_u32 s21, s21, s39")
        e("s_cmp_ge_u32 s20, s30")
        e("s_cselect_b32 s20, 0, s20")
        e("s_cselect_b32 s21, 0, s21")
        e("s_add_u32 s37, s37, 1")
        e("s_add_u32 s22, s22, 16384")
        e(f"s_and_b32 s22, s22, 0x{R * 16384 - 1:x}")

    producer_loop("K3", NST, R, 4, issue, D=int(os.environ.get("D2", 7)))
    e("K3_consumer:")
    srd(12, 48, 49, S * D * 2)
    srd(16, 46, 47, S * 2)
    srd(68, 50, 51, S * 4, WS_G)
    GB = 20
    e("v_lshrrev_b32 v27, 1, v2")
    e("v_and_b32 v26, 1, v2")
    e("v_and_b32 v12, 15, v1")
    e("v_lshl_add_u32 v12, v27, 5, v12")
    e("v_add_u32 v12, s35, v12")
    e("v_lshlrev_b32 v13, 2, v12")
    e(f"buffer_load_dword v{GB}, v13, s[68:71], 0 offen")
    e(f"buffer_load_dword v{GB + 1}, v13, s[68:71], 0 offen offset:64")
    e("v_lshlrev_b32 v13, 1, v12")
    e(f"buffer_load_ushort v{GB + 2}, v13, s[16:19], 0 offen")
    e(f"buffer_load_ushort v{GB + 3}, v13, s[16:19], 0 offen offset:32")
    e("v_lshlrev_b32 v24, 10, v12")
    e("v_lshrrev_b32 v13, 4, v1")
    e("v_lshlrev_b32 v13, 3, v13")
    e("v_lshl_add_u32 v13, v26, 6, v13")
    e("s_lshl_b32 s26, s36, 1")
    e("v_add3_u32 v24, v24, v13, s26")
    e(f"v_add_u32 v25, {16 * 1024}, v24")
    TRA, TRB, DIRA, DIRB = 28, 30, 32, 34
    CUR = 36
    for i in range(2):
        e(f"v_lshl_add_u32 v40, v26, 1, {i}")
        tr_read_base(TRA + i, 1, "v40", 42)
        e(f"v_lshl_add_u32 v40, v27, 1, {i}")
        tr_read_base(TRB + i, 1, "v40", 42)
        e(f"v_add_u32 v{TRB + i}, 8192, v{TRB + i}")
    dir_read_base(DIRA, 1, 42)
    e(f"v_lshl_add_u32 v{DIRB}, v27, 12, v{DIRA}")
    e(f"v_add_u32 v{DIRB}, 8192, v{DIRB}")
    e(f"v_lshl_add_u32 v{DIRA}, v26, 12, v{DIRA}")
    e(f"v_xor_b32 v{DIRA + 1}, 64, v{DIRA}")
    e(f"v_xor_b32 v{DIRB + 1}, 64, v{DIRB}")
    ACCS = (48, 64)
    FS = (80, 112)
    for i in range(32):
        e(f"v_mov_b32 v{48 + i}, 0")
    e("s_mov_b32 s23, 0")

    def addr_update(part):
        dirb, trb = (DIRA, TRB) if part == 1 else (DIRB, TRA)
        for i in range(2):
            e(f"v_add_u32 v{CUR + i}, s23, v{dirb + i}")
            e(f"v_add_u32 v{CUR + 2 + i}, s23, v{trb + i}")
        e("s_add_u32 s23, s23, 16384")
        e(f"s_and_b32 s23, s23, 0x{R * 16384 - 1:x}")

    def reads(st, part):
        dfo, tfo = (0, 16) if part == 1 else (16, 0)
        L = []
        for kk in range(2):
            for i in range(2):
                L.append(lambda kk=kk, i=i: e(
                    f"ds_read_b128 {vr(FS[st] + dfo + (kk * 2 + i) * 4, 4)}, v{CUR + kk} offset:{i * 2048}"))
            for i in range(2):
                for h in range(2):
                    L.append(lambda kk=kk, i=i, h=h: e(
                        f"ds_read_b64_tr_b16 {vr(FS[st] + tfo + (kk * 2 + i) * 4 + 2 * h, 2)}, v{CUR + 2 + i} offset:{kk * 4096 + h * 512}"))
        return L

    def mfmas(st, part):
        acc = ACCS[part - 1]
        L = []
        for kk in range(2):
            for mt in range(2):
                for nt in range(2):
                    L.append(lambda kk=kk, mt=mt, nt=nt: mfma(acc + (mt * 2 + nt) * 4, FS[st] + (kk * 2 + mt) * 4,
                                                              FS[st] + 16 + (kk * 2 + nt) * 4))
        return L

    def half(st, part, nxt):
        e("s_barrier")
        if nxt:
            addr_update(nxt)
            interleave(mfmas(st, part), reads(1 - st, nxt))
            e("s_waitcnt lgkmcnt(0)")
        else:
            for f in mfmas(st, part):
                f()

    e("s_barrier")
    addr_update(1)
    for f in reads(0, 1):
        f()
    e("s_waitcnt lgkmcnt(0)")
    e("s_mov_b32 s24, 0")
    e("K3_loop1:")
    half(0, 1, 1)
    half(1, 1, 1)
    e("s_add_u32 s24, s24, 1")
    e(f"s_cmp_lt_u32 s24, {N1 // 2 - 1}")
    e("s_cbranch_scc1 K3_loop1")
    half(0, 1, 1)
    half(1, 1, 2)
    e("s_mov_b32 s24, 0")
    e("K3_loop2:")
    half(0, 2, 2)
    half(1, 2, 2)
    e("s_add_u32 s24, s24, 1")
    e(f"s_cmp_lt_u32 s24, {N2 // 2 - 1}")
    e("s_cbranch_scc1 K3_loop2")
    half(0, 2, 2)
    half(1, 2, 0)
    e("s_waitcnt vmcnt(0)")
    e("s_nop 7")
    ACC1, ACC2 = ACCS
    T = 80
    for nt in range(2):
        e(f"v_sub_f32 v{T + 12}, 1.0, v{GB + nt}")
        e(f"v_cvt_pk_bf16_f32 v{T + 12}, v{T + 12}, v{T + 12}")
        e(f"v_lshlrev_b32 v{T + 12}, 16, v{T + 12}")
        e(f"v_lshlrev_b32 v{T + 13}, 16, v{GB + 2 + nt}")
        for mt in range(2):
            a1 = ACC1 + (mt * 2 + nt) * 4
            a2 = ACC2 + (mt * 2 + nt) * 4
            e(f"v_cvt_pk_bf16_f32 v{T}, v{a1}, v{a1 + 1}")
            e(f"v_cvt_pk_bf16_f32 v{T + 1}, v{a1 + 2}, v{a1 + 3}")
            unpack(T + 2, T + 3, T)
            unpack(T + 4, T + 5, T + 1)
            for r in range(4):
                e(f"v_add_f32 v{T + 2 + r}, v{T + 2 + r}, v{T + 13}")
            e(f"v_cvt_pk_bf16_f32 v{T}, v{T + 2}, v{T + 3}")
            e(f"v_cvt_pk_bf16_f32 v{T + 1}, v{T + 4}, v{T + 5}")
            unpack(T + 2, T + 3, T)
            unpack(T + 4, T + 5, T + 1)
            for r in range(4):
                e(f"v_mul_f32 v{T + 2 + r}, v{T + 2 + r}, v{T + 12}")
            e(f"v_cvt_pk_bf16_f32 v{T}, v{T + 2}, v{T + 3}")
            e(f"v_cvt_pk_bf16_f32 v{T + 1}, v{T + 4}, v{T + 5}")
            unpack(T + 2, T + 3, T)
            unpack(T + 4, T + 5, T + 1)
            e(f"v_cvt_pk_bf16_f32 v{T}, v{a2}, v{a2 + 1}")
            e(f"v_cvt_pk_bf16_f32 v{T + 1}, v{a2 + 2}, v{a2 + 3}")
            unpack(T + 6, T + 7, T)
            unpack(T + 8, T + 9, T + 1)
            for r in range(4):
                e(f"v_mul_f32 v{T + 6 + r}, v{T + 6 + r}, v{GB + nt}")
            e(f"v_cvt_pk_bf16_f32 v{T}, v{T + 6}, v{T + 7}")
            e(f"v_cvt_pk_bf16_f32 v{T + 1}, v{T + 8}, v{T + 9}")
            unpack(T + 6, T + 7, T)
            unpack(T + 8, T + 9, T + 1)
            for r in range(4):
                e(f"v_add_f32 v{T + 2 + r}, v{T + 2 + r}, v{T + 6 + r}")
            o = T + 16 + (nt * 2 + mt) * 2
            e(f"v_cvt_pk_bf16_f32 v{o}, v{T + 2}, v{T + 3}")
            e(f"v_cvt_pk_bf16_f32 v{o + 1}, v{T + 4}, v{T + 5}")
            e(f"buffer_store_dwordx2 {vr(o, 2)}, v{24 + nt}, s[12:15], 0 offen offset:{mt * 32}")
    e("K3_done:")
    e("s_endpgm")
    kernel_desc(name, 144)
    return name


def gen_k1():
    name = "gm_qkv_attn_kernel"
    CURK[0] = "1"
    R = 4
    STG = 36864
    NST = D // 64
    BREG = 24576
    kernel_begin(name)
    e("s_cmp_ge_u32 s2, 256")
    e("s_cbranch_scc1 K1_done")
    e("s_load_dwordx4 s[40:43], s[0:1], 0")
    e("s_load_dwordx2 s[44:45], s[0:1], 64")
    e("s_load_dwordx2 s[50:51], s[0:1], 88")
    e("s_load_dwordx2 s[52:53], s[0:1], 16")
    e("s_load_dwordx2 s[54:55], s[0:1], 32")
    e("s_load_dwordx2 s[56:57], s[0:1], 48")
    e("v_and_b32 v1, 63, v0")
    e("v_bfe_u32 v2, v0, 6, 2")
    e("v_lshrrev_b32 v3, 8, v0")
    e("s_and_b32 s34, s2, 7")
    e("s_lshr_b32 s35, s2, 3")
    e("s_lshl_b32 s34, s34, 5")
    e("s_add_u32 s34, s34, s35")
    e("s_lshr_b32 s35, s34, 3")
    e("s_and_b32 s36, s34, 7")
    e("s_lshl_b32 s35, s35, 6")
    e("v_readfirstlane_b32 s25, v2")
    e("v_readfirstlane_b32 s27, v3")
    e("s_waitcnt lgkmcnt(0)")
    srd(8, 40, 41, S * D * 2)
    stamp(0)
    e("s_cmp_eq_u32 s27, 0")
    e("s_cbranch_scc1 K1_consumer")
    srd(4, 42, 43, D * 3 * D * 2)
    srd(12, 50, 51, S * D * 2, WS_H)
    srd(60, 50, 51, S * 4, WS_G)
    srd(64, 44, 45, D * 2)
    LX = 100
    e("s_lshl_b32 s26, s34, 3")
    e("s_lshl_b32 s27, s25, 1")
    e("s_add_u32 s26, s26, s27")
    e("s_lshl_b32 s27, s26, 10")
    e("v_lshlrev_b32 v3, 4, v1")
    e("v_add_u32 v98, s27, v3")
    e(f"buffer_load_dwordx4 {vr(LX, 4)}, v98, s[8:11], 0 offen")
    e(f"buffer_load_dwordx4 {vr(LX + 4, 4)}, v98, s[8:11], 0 offen offset:1024")
    e(f"buffer_load_dwordx4 {vr(LX + 8, 4)}, v3, s[64:67], 0 offen")
    DA, DB = 4, 6
    e("v_lshrrev_b32 v12, 3, v1")
    e("v_and_b32 v13, 7, v1")
    e("v_bfe_u32 v14, v1, 4, 1")
    e("v_lshl_add_u32 v15, v2, 4, v12")
    e("s_lshl_b32 s26, s36, 7")
    for j in range(2):
        e(f"v_or_b32 v16, {2 * j}, v14")
        e("v_lshlrev_b32 v16, 1, v16")
        e("v_xor_b32 v16, v13, v16")
        e("v_lshlrev_b32 v16, 4, v16")
        e(f"v_add_u32 v17, {8 * j}, v15")
        e("s_movk_i32 s27, 3072")
        e("v_mul_lo_u32 v17, v17, s27")
        e(f"v_add3_u32 v{DA + j}, v17, v16, s26")
    e("v_mul_u32_u24 v15, 24, v2")
    e("v_add_u32 v15, v15, v12")
    for j in range(3):
        e(f"v_add_u32 v17, {8 * j}, v15")
        e("v_bfe_u32 v16, v17, 1, 3")
        e("v_xor_b32 v16, v13, v16")
        e("v_lshlrev_b32 v16, 4, v16")
        e("s_sub_u32 s27, s35, 16")
        e("v_add_u32 v18, s27, v17")
        e("v_max_i32 v18, 0, v18")
        e("v_lshl_add_u32 v18, v18, 10, v16")
        e("v_cmp_gt_u32 vcc, 80, v17")
        e(f"v_mov_b32 v19, 0x{BIG:x}")
        e("s_nop 0")
        e(f"v_cndmask_b32 v{DB + j}, v19, v18, vcc")
    e("s_lshl_b32 s22, s25, 11")
    e("s_mul_i32 s28, s25, 3072")
    e(f"s_add_u32 s28, s28, {BREG}")
    e("s_bfe_u32 s26, s34, 0x20003")
    e("s_lshl_b32 s26, s26, 1")
    e("s_add_u32 s26, s26, s36")
    e("s_and_b32 s26, s26, 7")
    if os.environ.get("NOROT"):
        e("s_mov_b32 s26, 0")
    e(f"s_mul_i32 s20, s26, {64 * 3072}")
    e("s_lshl_b32 s21, s26, 7")
    e("s_mov_b32 s29, 0")

    def issue():
        for j in range(3):
            e("s_add_u32 s26, s28, s29")
            e(f"s_add_u32 m0, s26, {j * 1024}")
            e("s_nop 0")
            e(f"buffer_load_dwordx4 v{DB + j}, s[8:11], s21 offen lds")
        for X in range(3):
            for j in range(2):
                e("s_add_u32 s26, s22, s29")
                e(f"s_add_u32 m0, s26, {X * 7168 + j * 1024}")
                e("s_nop 0")
                e(f"buffer_load_dwordx4 v{DA + j}, s[4:7], s20 offen offset:{X * 1024} lds")
        e(f"s_add_u32 s20, s20, {64 * 3072}")
        e("s_add_u32 s21, s21, 128")
        e("s_cmp_ge_u32 s21, 1024")
        e("s_cselect_b32 s20, 0, s20")
        e("s_cselect_b32 s21, 0, s21")
        e(f"s_add_u32 s29, s29, {STG}")
        e(f"s_cmp_ge_u32 s29, {R * STG}")
        e("s_cselect_b32 s29, 0, s29")

    def ln_tail():
        XF = 112
        GW = 128
        for j in range(4):
            unpack(GW + 2 * j, GW + 2 * j + 1, LX + 8 + j)
        e("s_mov_b32 s26, 0x3b000000")
        e("s_mov_b32 s27, 0x3727c5ac")
        e("s_mov_b32 s33, 0xbfb8aa3b")
        for row in range(2):
            x = XF + 8 * row
            for j in range(4):
                unpack(x + 2 * j, x + 2 * j + 1, LX + 4 * row + j)
            t = 136
            e(f"v_add_f32 v{t}, v{x}, v{x + 1}")
            for j in range(2, 8):
                e(f"v_add_f32 v{t}, v{t}, v{x + j}")
            wave_sum(t, 30)
            for j in range(4):
                e(f"v_mul_f32 v{t + 1}, v{x + 2 * j}, v{GW + 2 * j}")
                e(f"v_mul_f32 v{t + 2}, v{x + 2 * j + 1}, v{GW + 2 * j + 1}")
                e(f"v_cvt_pk_bf16_f32 v{t + 1}, v{t + 1}, v{t + 2}")
                unpack(t + 2, t + 3, t + 1)
                if j == 0:
                    e(f"v_add_f32 v{t + 4}, v{t + 2}, v{t + 3}")
                else:
                    e(f"v_add_f32 v{t + 4}, v{t + 4}, v{t + 2}")
                    e(f"v_add_f32 v{t + 4}, v{t + 4}, v{t + 3}")
            wave_sum(t + 4, 31)
            e("s_nop 1")
            e(f"v_mov_b32 v{t}, s26")
            e(f"v_mul_f32 v{t}, s30, v{t}")
            e(f"v_mov_b32 v{t + 5}, 0")
            for j in range(8):
                e(f"v_sub_f32 v{t + 1}, v{x + j}, v{t}")
                e(f"v_fmac_f32 v{t + 5}, v{t + 1}, v{t + 1}")
            wave_sum(t + 5, 32)
            e("s_nop 1")
            e(f"v_mov_b32 v{t + 1}, s26")
            e(f"v_mul_f32 v{t + 1}, s32, v{t + 1}")
            e(f"v_cvt_pk_bf16_f32 v{t + 1}, v{t + 1}, v{t}")
            e(f"v_and_b32 v{t}, 0xffff0000, v{t + 1}")
            e(f"v_lshlrev_b32 v{t + 1}, 16, v{t + 1}")
            e(f"v_add_f32 v{t + 1}, s27, v{t + 1}")
            e(f"v_cvt_pk_bf16_f32 v{t + 1}, v{t + 1}, v{t + 1}")
            e(f"v_lshlrev_b32 v{t + 1}, 16, v{t + 1}")
            e(f"v_sqrt_f32 v{t + 1}, v{t + 1}")
            e("s_nop 0")
            e(f"v_cvt_pk_bf16_f32 v{t + 1}, v{t + 1}, v{t + 1}")
            e(f"v_lshlrev_b32 v{t + 1}, 16, v{t + 1}")
            e(f"v_rcp_f32 v{t + 1}, v{t + 1}")
            e("s_nop 0")
            ho = 144 + 4 * row
            for j in range(4):
                e(f"v_sub_f32 v{t + 2}, v{x + 2 * j}, v{t}")
                e(f"v_sub_f32 v{t + 3}, v{x + 2 * j + 1}, v{t}")
                e(f"v_cvt_pk_bf16_f32 v{t + 2}, v{t + 2}, v{t + 3}")
                unpack(t + 3, t + 4, t + 2)
                e(f"v_mul_f32 v{t + 3}, v{t + 3}, v{t + 1}")
                e(f"v_mul_f32 v{t + 4}, v{t + 4}, v{t + 1}")
                e(f"v_cvt_pk_bf16_f32 v{ho + j}, v{t + 3}, v{t + 4}")
            e(f"buffer_store_dwordx4 {vr(ho, 4)}, v98, s[12:15], 0 offen offset:{row * 1024}")
            e(f"v_mov_b32 v{t + 2}, s31")
            e(f"v_cvt_pk_bf16_f32 v{t + 2}, v{t + 2}, v{t + 2}")
            e(f"v_lshlrev_b32 v{t + 2}, 16, v{t + 2}")
            e(f"v_mul_f32 v{t + 2}, s33, v{t + 2}")
            e(f"v_exp_f32 v{t + 2}, v{t + 2}")
            e("s_nop 0")
            e(f"v_add_f32 v{t + 2}, 1.0, v{t + 2}")
            e(f"v_rcp_f32 v{t + 2}, v{t + 2}")
            e("s_nop 0")
            e(f"v_cvt_pk_bf16_f32 v{t + 2}, v{t + 2}, v{t + 2}")
            e(f"v_lshlrev_b32 v{152 + row}, 16, v{t + 2}")
            e(f"v_lshrrev_b32 v{t + 3}, 8, v98")
            e("s_mov_b64 exec, 1")
            e(f"buffer_store_dword v{152 + row}, v{t + 3}, s[60:63], 0 offen offset:{row * 4}")
            e("s_mov_b64 exec, -1")

    producer_loop("K1", NST, R, 9, issue, D=3, D0=2, tail=ln_tail)
    e("K1_consumer:")
    srd(16, 50, 51, S * D * 2, WS_O)
    srd(68, 54, 55, S * F * 2)
    e("s_mul_i32 s26, s34, 28672")
    e("s_lshl_b32 s27, s25, 13")
    e("s_add_u32 s26, s26, s27")
    e("v_lshlrev_b32 v253, 6, v1")
    e("v_add_u32 v253, s26, v253")
    e("v_add_u32 v252, 4096, v253")
    e("buffer_load_dword v254, v253, s[68:71], 0 offen")
    e("buffer_load_dword v254, v252, s[68:71], 0 offen")
    TRA, DIRB = 20, 22
    CUR = 24
    tr_read_base(TRA, 1, "v2", 30)
    dir_read_base(DIRB, 1, 30)
    e(f"v_add_u32 v{DIRB}, {BREG}, v{DIRB}")
    e(f"v_xor_b32 v{DIRB + 1}, 64, v{DIRB}")
    ACC = 192
    for X in range(3):
        for nt in range(5):
            if X == 0 and nt == 0:
                continue
            for r in range(4):
                e(f"v_mov_b32 v{ACC + (X * 5 + nt) * 4 + r}, 0")
    FS = (32, 128)
    e("s_mov_b32 s23, 0")

    def addr_update():
        e(f"v_add_u32 v{CUR}, s23, v{TRA}")
        e(f"v_add_u32 v{CUR + 1}, s23, v{DIRB}")
        e(f"v_add_u32 v{CUR + 2}, s23, v{DIRB + 1}")
        e(f"s_add_u32 s23, s23, {STG}")
        e(f"s_cmp_ge_u32 s23, {R * STG}")
        e("s_cselect_b32 s23, 0, s23")

    def reads(st):
        L = []
        for kk in range(2):
            for X in range(3):
                for h in range(2):
                    L.append(lambda kk=kk, X=X, h=h: e(
                        f"ds_read_b64_tr_b16 {vr(FS[st] + (kk * 3 + X) * 4 + 2 * h, 2)}, v{CUR} offset:{X * 8192 + kk * 4096 + h * 512}"))
            for nt in range(5):
                L.append(lambda kk=kk, nt=nt: e(
                    f"ds_read_b128 {vr(FS[st] + 24 + (kk * 5 + nt) * 4, 4)}, v{CUR + 1 + kk} offset:{nt * 2048}"))
        return L

    def mfmas(st):
        L = []
        for kk in range(2):
            for nt in range(5):
                for X in range(3):
                    if X == 0 and nt == 0:
                        continue
                    L.append(lambda kk=kk, nt=nt, X=X: mfma(ACC + (X * 5 + nt) * 4, FS[st] + (kk * 3 + X) * 4,
                                                            FS[st] + 24 + (kk * 5 + nt) * 4))
        return L

    def half(st, do_reads=True):
        e("s_barrier")
        if do_reads:
            addr_update()
            interleave(mfmas(st), reads(1 - st))
            e("s_waitcnt lgkmcnt(0)")
        else:
            for f in mfmas(st):
                f()

    stamp(1)
    stamp(2)
    e("s_barrier")
    stamp(3)
    addr_update()
    rl = reads(0)
    for i, f in enumerate(rl):
        f()
        if i == 11:
            e("s_waitcnt lgkmcnt(4)")
    e("s_waitcnt lgkmcnt(0)")
    e("s_mov_b32 s24, 0")
    e("K1_loop:")
    half(0)
    half(1)
    e("s_add_u32 s24, s24, 1")
    e(f"s_cmp_lt_u32 s24, {NST // 2 - 1}")
    e("s_cbranch_scc1 K1_loop")
    half(0)
    half(1, False)
    stamp(4)
    QR, KR, VRG = 0, 2048, 4608
    e("v_and_b32 v3, 15, v1")
    e("v_lshrrev_b32 v9, 4, v1")
    e("v_lshlrev_b32 v10, 4, v3")
    e("v_and_b32 v11, 1, v9")
    e("v_lshl_add_u32 v10, v11, 3, v10")
    e("v_lshl_add_u32 v10, v2, 13, v10")
    e("v_lshrrev_b32 v11, 1, v9")
    e("v_lshl_add_u32 v12, v11, 10, v10")
    e("v_mul_u32_u24 v11, 1280, v11")
    e("v_add_u32 v13, v11, v10")
    e("s_nop 7")
    for X in range(3):
        for nt in range(5):
            if X == 0 and nt == 0:
                continue
            a = ACC + (X * 5 + nt) * 4
            pk = 14 + 2 * ((X * 5 + nt) % 2)
            e(f"v_cvt_pk_bf16_f32 v{pk}, v{a}, v{a + 1}")
            e(f"v_cvt_pk_bf16_f32 v{pk + 1}, v{a + 2}, v{a + 3}")
            if X == 0:
                e(f"ds_write_b64 v12, {vr(pk, 2)} offset:{QR + (nt - 1) * 256}")
            else:
                e(f"ds_write_b64 v13, {vr(pk, 2)} offset:{(KR if X == 1 else VRG) + nt * 256}")
    e("v_lshlrev_b32 v10, 4, v1")
    e("v_lshl_add_u32 v10, v2, 13, v10")
    e("s_waitcnt lgkmcnt(0)")
    Q, KK, VV = 32, 40, 104
    for p in range(2):
        e(f"ds_read_b128 {vr(Q + 4 * p, 4)}, v10 offset:{QR + p * 1024}")
    for w in range(8):
        for p in range(2):
            e(f"ds_read_b128 {vr(KK + 8 * w + 4 * p, 4)}, v10 offset:{KR + p * 1280 + (16 - 2 * w) * 16}")
        if w == 5:
            e("s_waitcnt lgkmcnt(8)")
    e("s_waitcnt lgkmcnt(0)")
    for w in range(8):
        for p in range(2):
            e(f"ds_read_b128 {vr(VV + 8 * w + 4 * p, 4)}, v10 offset:{VRG + p * 1280 + (16 - 2 * w) * 16}")
        if w == 5:
            e("s_waitcnt lgkmcnt(8)")
    LG = 168
    for w in range(8):
        e(f"v_mov_b32 v{LG + w}, 0")
    for j in range(8):
        for w in range(8):
            e(f"v_dot2_f32_bf16 v{LG + w}, v{Q + j}, v{KK + 8 * w + j}, v{LG + w}")
    e("s_nop 3")
    e("v_add_u32 v11, s35, v1")
    e("v_mov_b32 v12, 0xce6e0000")
    for u in range(4):
        e(f"v_cvt_pk_bf16_f32 v14, v{LG + 2 * u}, v{LG + 2 * u + 1}")
        unpack(LG + 2 * u, LG + 2 * u + 1, 14)
    for w in range(8):
        e(f"v_mul_f32 v{LG + w}, 0x3e800000, v{LG + w}")
    for w in range(1, 8):
        e(f"v_cmp_le_u32 vcc, {2 * w}, v11")
        e("s_nop 1")
        e(f"v_cndmask_b32 v{LG + w}, v12, v{LG + w}, vcc")
    e(f"v_max3_f32 v13, v{LG}, v{LG + 1}, v{LG + 2}")
    e(f"v_max3_f32 v13, v13, v{LG + 3}, v{LG + 4}")
    e(f"v_max3_f32 v13, v13, v{LG + 5}, v{LG + 6}")
    e(f"v_max_f32 v13, v13, v{LG + 7}")
    e("s_mov_b32 s26, 0x3fb8aa3b")
    for w in range(8):
        e(f"v_sub_f32 v{LG + w}, v{LG + w}, v13")
        e(f"v_mul_f32 v{LG + w}, s26, v{LG + w}")
        e(f"v_exp_f32 v{LG + w}, v{LG + w}")
    e("s_nop 0")
    e(f"v_add_f32 v13, v{LG}, v{LG + 1}")
    for w in range(2, 8):
        e(f"v_add_f32 v13, v13, v{LG + w}")
    e("v_rcp_f32 v13, v13")
    e("s_nop 0")
    for w in range(8):
        e(f"v_mul_f32 v{LG + w}, v{LG + w}, v13")
    PP = 176
    for u in range(4):
        e(f"v_cvt_pk_bf16_f32 v{PP + u}, v{LG + 2 * u}, v{LG + 2 * u + 1}")
    OA = 180
    for j in range(16):
        e(f"v_mov_b32 v{OA + j}, 0")
    e("s_mov_b32 s26, 0x05040100")
    e("s_mov_b32 s27, 0x07060302")
    e("s_waitcnt lgkmcnt(0)")
    TT = 196
    for u in range(4):
        for j in range(8):
            a = VV + 8 * (2 * u) + j
            b = VV + 8 * (2 * u + 1) + j
            e(f"v_perm_b32 v{TT + 2 * j}, v{b}, v{a}, s26")
            e(f"v_perm_b32 v{TT + 2 * j + 1}, v{b}, v{a}, s27")
        for j in range(16):
            e(f"v_dot2_f32_bf16 v{OA + j}, v{TT + j}, v{PP + u}, v{OA + j}")
    e("s_nop 3")
    for j in range(8):
        e(f"v_cvt_pk_bf16_f32 v{TT + j}, v{OA + 2 * j}, v{OA + 2 * j + 1}")
    e("v_lshlrev_b32 v11, 10, v11")
    e("s_lshl_b32 s26, s36, 7")
    e("s_lshl_b32 s27, s25, 5")
    e("s_add_u32 s26, s26, s27")
    e("v_add_u32 v11, s26, v11")
    e(f"buffer_store_dwordx4 {vr(TT, 4)}, v11, s[16:19], 0 offen")
    e(f"buffer_store_dwordx4 {vr(TT + 4, 4)}, v11, s[16:19], 0 offen offset:16")
    stamp(5)
    e("s_waitcnt vmcnt(0)" if STAMP == "1" else "")
    stamp(6)
    stamp_dump(7, 50)
    e("K1_done:")
    e("s_endpgm")
    kernel_desc(name, 256)
    return name


def main():
    hdr = [
        "; Gated mix of dilated sliding-window attention and MLP-Mixer token mixing (gfx950).",
        "; Generated by gen/gen2.py.  Workspace: h @0, o @2MiB, u @4MiB, g @6MiB.",
        "; @launch kernel=gm_qkv_attn_kernel grid=(256,1,1) block=(512,1,1) lds=147456",
        "; @launch kernel=gm_gemm1_kernel grid=(224,1,1) block=(512,1,1) lds=131072",
        "; @launch kernel=gm_gemm2_kernel grid=(256,1,1) block=(512,1,1) lds=131072",
        '.amdgcn_target "amdgcn-amd-amdhsa--gfx950"',
    ]
    gen_k1()
    gen_k2()
    gen_k3()
    txt = "\n".join(hdr + [l for l in common.out if l.strip() != ""]) + "\n"
    path = sys.argv[1] if len(sys.argv) > 1 else f"cdna_kernels/{NAME}.s"
    open(path, "w").write(txt)


if __name__ == "__main__":
    main()
```

```python
import os
import sys

sys.path.insert(0, os.path.dirname(os.path.abspath(__file__)))
from common import *
import common

KNAME = NAME + "_kernel"
RG = 8
DG = int(os.environ.get("DG", 7))
XU = int(os.environ.get("XU", 4))
WS_F = 8 << 20
FL_H, FL_O, FL_U = 0, 16384, 32768
SPIN = 200000
CODE_KB = 32
FINE = bool(os.environ.get('FINE'))
ROT = os.environ.get("ROT", "q1o2")

PX, PWQKV, PWO, PW1, PB1, PW2, PB2, PGW, POUT, PDBG, PWS = 40, 42, 44, 48, 50, 52, 54, 56, 58, 60, 62


STAMP = os.environ.get("STAMP", "")
_sn = [0]


def stamp():
    if not STAMP:
        return
    if STAMP == "dbg":
        k = _sn[0]
        _sn[0] += 1
        sel = [0, 1, 3, 4, 5, 7, 8, 9, 11, 12, 14, 15, 16, 17]
        if k not in sel:
            return
        e(f"s_cmp_lg_u32 s2, {os.environ.get('SWG', '0')}")
        e(f"s_cbranch_scc1 st_skip{k}")
        e("s_cmp_lg_u32 s25, 0")
        e(f"s_cbranch_scc1 st_skip{k}")
        e("s_memrealtime s[96:97]")
        e("s_waitcnt lgkmcnt(0)")
        e(f"v_mov_b32 v164, {4 * (1 + sel.index(k))}")
        e("v_mov_b32 v165, s96")
        e("s_mov_b64 exec, 1")
        e(f"global_store_dword v164, v165, s[{PDBG}:{PDBG + 1}]")
        e("s_mov_b64 exec, -1")
        e(f"st_skip{k}:")
        return
    if _sn[0] == 0:
        e(f"s_add_u32 s100, s{PWS}, 0x1000000")
        e(f"s_addc_u32 s101, s{PWS + 1}, 0")
        e("s_lshl_b32 s99, s2, 2")
        e("s_add_u32 s99, s99, s25")
        e("s_lshl_b32 s99, s99, 8")
    e("s_memrealtime s[96:97]")
    e("s_waitcnt lgkmcnt(0)")
    e("v_mov_b32 v164, s99")
    e("v_mov_b32 v165, s96")
    e("s_mov_b64 exec, 1")
    e(f"global_store_dword v164, v165, s[100:101] offset:{4 * _sn[0]}")
    e("s_mov_b64 exec, -1")
    _sn[0] += 1


def stamp_dump():
    pass


def interleave(mf, rd):
    n, m = len(mf), len(rd)
    k = 0
    for i, f in enumerate(mf):
        want = (m * (i + 1) + n - 1) // n
        while k < want:
            rd[k]()
            k += 1
        f()
    while k < m:
        rd[k]()
        k += 1


def schedule(N, D, D0, hold=None, cap=2):
    steps = []
    issued = 0
    for b in range(N + 1):
        ks = []
        lim = min(N, b + min(D, D0 + b))
        while issued < lim and (b == 0 or len(ks) < cap) and (hold is None or hold(issued, b)):
            ks.append(issued)
            issued += 1
        steps.append((ks, max(issued - b - 1, 0)))
    return steps


def emit_producer(tag, steps, ND, issue, seg_of, switch, pre_barrier=False):
    cur_seg = [None]
    pre = [pre_barrier]

    def one(ks, rem):
        for n_, k in enumerate(ks):
            if seg_of(k) != cur_seg[0]:
                cur_seg[0] = seg_of(k)
                switch(cur_seg[0])
            issue()
            if pre[0] and n_ == 1:
                e("s_barrier")
                pre[0] = False
        e(f"s_waitcnt vmcnt({ND * rem})")
        e("s_barrier")

    i = 0
    while i < len(steps):
        ks, rem = steps[i]
        j = i
        if len(ks) == 1 and seg_of(ks[0]) == cur_seg[0]:
            while (j + 1 < len(steps) and len(steps[j + 1][0]) == 1 and steps[j + 1][1] == rem
                   and seg_of(steps[j + 1][0][0]) == cur_seg[0]):
                j += 1
        cnt = j - i + 1
        if cnt >= 3:
            e("s_mov_b32 s24, 0")
            e(f"{tag}_ploop{i}:")
            one(ks, rem)
            e("s_add_u32 s24, s24, 1")
            e(f"s_cmp_lt_u32 s24, {cnt}")
            e(f"s_cbranch_scc1 {tag}_ploop{i}")
            i = j + 1
        else:
            one(ks, rem)
            i += 1


_pl = [0]
NAUX = int(os.environ.get('NAUX', 16))


def set_flag(off_sgpr, vt):
    k = _pl[0]
    _pl[0] += 1
    e("s_cmp_lg_u32 s25, 0")
    e(f"s_cbranch_scc1 flag_done{k}")
    e(f"v_mov_b32 v{vt}, {off_sgpr}")
    e(f"v_mov_b32 v{vt + 1}, s88")
    e("s_mov_b64 exec, 1")
    e(f"buffer_store_dword v{vt + 1}, v{vt}, s[92:95], 0 offen sc1")
    e("s_mov_b64 exec, -1")
    e(f"flag_done{k}:")


def get_tag(vt):
    k = _pl[0]
    _pl[0] += 1
    e("s_cmp_lg_u32 s25, 0")
    e(f"s_cbranch_scc1 tag_done{k}")
    e(f"v_mov_b32 v{vt}, 0")
    e("s_mov_b32 s90, 0")
    e(f"tag_loop{k}:")
    e(f"buffer_load_dword v{vt + 1}, v{vt}, s[72:75], 0 offen sc1")
    e("s_waitcnt vmcnt(0)")
    e(f"v_readfirstlane_b32 s88, v{vt + 1}")
    e("s_add_u32 s90, s90, 1")
    e(f"s_cmp_ge_u32 s90, {SPIN}")
    e(f"s_cbranch_scc1 tag_done{k}")
    e("s_cmp_lg_u32 s88, 0")
    e(f"s_cbranch_scc1 tag_done{k}")
    e("s_sleep 1")
    e(f"s_branch tag_loop{k}")
    e(f"tag_done{k}:")


def poll_addr(off, n, vt):
    if n < 64:
        e(f"v_min_u32 v{vt}, {n - 1}, v1")
    else:
        e(f"v_mov_b32 v{vt}, v1")
    e(f"v_lshlrev_b32 v{vt}, 6, v{vt}")
    e(f"v_add_u32 v{vt}, {off}, v{vt}")


def poll_loads(n, vt):
    for i in range((n + 63) // 64):
        if i:
            e(f"v_add_u32 v{vt + 1}, {4096 * i}, v{vt}")
        e(f"buffer_load_dword v{vt + 2 + i}, v{vt + (1 if i else 0)}, s[92:95], 0 offen sc1")


def poll_issue(off, n, vt):
    k = _pl[0]
    _pl[0] += 1
    poll_addr(off, n, vt)
    e("s_cmp_lg_u32 s25, 0")
    e(f"s_cbranch_scc1 polli_done{k}")
    poll_loads(n, vt)
    e(f"polli_done{k}:")


def poll(off, n, vt, early=False):
    k = _pl[0]
    _pl[0] += 1
    nl = (n + 63) // 64
    e("s_cmp_lg_u32 s25, 0")
    e(f"s_cbranch_scc1 poll_done{k}")
    e("s_mov_b32 s90, 0")
    if early:
        e(f"s_branch poll_chk{k}")
    else:
        poll_addr(off, n, vt)
    e(f"poll_loop{k}:")
    poll_loads(n, vt)
    e(f"poll_chk{k}:")
    e("s_waitcnt vmcnt(0)")
    e(f"v_cmp_ne_u32 vcc, s88, v{vt + 2}")
    for i in range(1, nl):
        e(f"v_cmp_ne_u32 s[96:97], s88, v{vt + 2 + i}")
        e("s_or_b64 vcc, vcc, s[96:97]")
    e("s_add_u32 s90, s90, 1")
    e(f"s_cmp_ge_u32 s90, {SPIN}")
    e(f"s_cbranch_scc1 poll_done{k}")
    e("s_cmp_eq_u64 vcc, 0")
    e(f"s_cbranch_scc1 poll_done{k}")
    e(f"s_sleep {os.environ.get('SLP', 2)}")
    e(f"s_branch poll_loop{k}")
    e(f"poll_done{k}:")


def gen():
    kernel_begin(KNAME)
    e("s_cmp_ge_u32 s2, 256")
    e("s_cbranch_scc1 L_done")
    e("s_load_dwordx16 s[40:55], s[0:1], 0")
    e("s_load_dwordx8 s[56:63], s[0:1], 64")
    e("v_and_b32 v1, 63, v0")
    e("v_lshrrev_b32 v3, 6, v0")
    e("v_subrev_u32 v2, 4, v3")
    e("v_cmp_gt_u32 vcc, 4, v3")
    e("s_nop 1")
    e("v_cndmask_b32 v2, v2, v3, vcc")
    e("s_and_b32 s32, s2, 7")
    e("s_lshr_b32 s33, s2, 3")
    e("s_lshl_b32 s34, s32, 5")
    e("s_add_u32 s34, s34, s33")
    e("s_lshr_b32 s35, s34, 3")
    e("s_lshl_b32 s35, s35, 6")
    e("s_and_b32 s36, s34, 7")
    e("s_mul_i32 s64, s32, 28")
    e("s_add_u32 s64, s64, s33")
    e("s_lshr_b32 s65, s64, 3")
    e("s_lshl_b32 s65, s65, 7")
    e("s_and_b32 s66, s64, 7")
    e("v_readfirstlane_b32 s25, v2")
    e("v_readfirstlane_b32 s27, v3")
    e("s_waitcnt lgkmcnt(0)")
    srd(8, PX, PX + 1, S * D * 2)
    e("s_cmp_lt_u32 s27, 4")
    e("s_cbranch_scc1 L_consumer")
    producer()
    e("L_consumer:")
    consumer()
    e("L_done:")
    e("s_endpgm")
    e("L_code_end:")
    kernel_desc(KNAME, 168)


def producer():
    R1, STG, NST1, BREG = 4, 40960, D // 64, 24576
    if os.environ.get("CODEPF", "1") != "0":
        e("s_cmp_lg_u32 s25, 7")
        e("s_cbranch_scc1 code_pf_done")
        e("s_getpc_b64 s[68:69]")
        e("code_pf_pc:")
        e(f"s_sub_u32 s68, s68, code_pf_pc-{KNAME}")
        e("s_subb_u32 s69, s69, 0")
        e("s_and_b32 s69, s69, 0xffff")
        e(f"s_mov_b32 s70, L_code_end-{KNAME}")
        e("s_mov_b32 s71, 0x00020000")
        e("v_lshlrev_b32 v40, 6, v1")
        for i in range(CODE_KB // 4):
            if i:
                e("v_add_u32 v40, 4096, v40")
            e("buffer_load_dword v41, v40, s[68:71], 0 offen")
        e("code_pf_done:")
    srd(4, PWQKV, PWQKV + 1, D * 3 * D * 2)
    DA, DB = 4, 6
    e("v_lshrrev_b32 v12, 3, v1")
    e("v_and_b32 v13, 7, v1")
    e("v_bfe_u32 v14, v1, 4, 1")
    e("v_and_b32 v15, 1, v2")
    e("v_lshl_or_b32 v14, v15, 1, v14")
    e("v_lshlrev_b32 v14, 1, v14")
    e("v_xor_b32 v14, v13, v14")
    e("v_lshlrev_b32 v14, 4, v14")
    e("v_lshl_add_u32 v16, v2, 3, v12")
    e("v_bfe_u32 v17, v16, 1, 3")
    e("v_xor_b32 v17, v13, v17")
    e("v_lshlrev_b32 v17, 4, v17")
    e("s_lshl_b32 s26, s36, 7")
    e("s_movk_i32 s27, 3072")
    e("v_mul_lo_u32 v18, v16, s27")
    e(f"v_add3_u32 v{DA}, v18, v14, s26")
    for j in range(2):
        e("v_lshl_add_u32 v15, v2, 4, v12")
        e(f"v_add_u32 v15, {8 * j}, v15")
        e("v_bfe_u32 v19, v15, 1, 3")
        e("v_xor_b32 v19, v13, v19")
        e("v_lshlrev_b32 v19, 4, v19")
        e("s_sub_u32 s27, s35, 16")
        e("v_add_u32 v18, s27, v15")
        e("v_max_i32 v18, 0, v18")
        e("v_lshl_add_u32 v18, v18, 10, v19")
        e("v_cmp_gt_u32 vcc, 80, v15")
        e(f"v_mov_b32 v19, 0x{BIG:x}")
        e("s_nop 0")
        e(f"v_cndmask_b32 v{DB + j}, v19, v18, vcc")
    e("s_lshl_b32 s22, s25, 10")
    e("s_lshl_b32 s28, s25, 11")
    e(f"s_add_u32 s28, s28, {BREG}")
    e("s_bfe_u32 s26, s34, 0x20003")
    e("s_lshl_b32 s26, s26, 1")
    e("s_add_u32 s26, s26, s36")
    e("s_and_b32 s26, s26, 7")
    e(f"s_mul_i32 s20, s26, {64 * 3072}")
    e("s_lshl_b32 s21, s26, 7")
    e("s_mov_b32 s29, 0")

    def issue1():
        for j in range(2):
            e("s_add_u32 s26, s28, s29")
            e(f"s_add_u32 m0, s26, {j * 1024}")
            e("s_nop 0")
            e(f"buffer_load_dwordx4 v{DB + j}, s[8:11], s21 offen lds")
        for X in range(3):
            e("s_add_u32 s26, s22, s29")
            e(f"s_add_u32 m0, s26, {X * 7168}")
            e("s_nop 0")
            e(f"buffer_load_dwordx4 v{DA}, s[4:7], s20 offen offset:{X * 1024} lds")
        e(f"s_add_u32 s20, s20, {64 * 3072}")
        e("s_add_u32 s21, s21, 128")
        e("s_cmp_ge_u32 s21, 1024")
        e("s_cselect_b32 s20, 0, s20")
        e("s_cselect_b32 s21, 0, s21")
        e(f"s_add_u32 s29, s29, {STG}")
        e(f"s_cmp_ge_u32 s29, {R1 * STG}")
        e("s_cselect_b32 s29, 0, s29")

    V = {"G1": (20, 21), "WO": (22, 23), "G2": (24, 25)}
    e("s_movk_i32 s26, 3584")
    e("v_mul_lo_u32 v18, v16, s26")
    e(f"v_add3_u32 v{V['G1'][0]}, v18, v14, s65")
    e("v_lshlrev_b32 v18, 10, v16")
    e("s_lshl_b32 s26, s66, 7")
    e(f"v_add3_u32 v{V['G1'][1]}, v18, v14, s26")
    e("s_lshl_b32 s26, s36, 7")
    e(f"v_add3_u32 v{V['WO'][0]}, v18, v14, s26")
    e("v_add_u32 v18, s35, v16")
    e("v_lshlrev_b32 v18, 10, v18")
    e(f"v_add_u32 v{V['WO'][1]}, v18, v17")
    e("s_lshl_b32 s26, s36, 6")
    e("v_add_u32 v18, s26, v16")
    e("s_movk_i32 s26, 3584")
    e("v_mul_lo_u32 v18, v18, s26")
    e(f"v_add_u32 v{V['G2'][0]}, v18, v17")
    e("v_lshlrev_b32 v18, 12, v16")
    e("s_lshl_b32 s26, s35, 1")
    e(f"v_add3_u32 v{V['G2'][1]}, v18, v14, s26")

    emit_producer("P1", schedule(NST1, 3, 2), 5, issue1, lambda k: "Q", lambda s: None)

    CA, CB = 32, 34
    e("s_lshl_b32 s22, s25, 10")

    def switch(seg):
        a, b = V[seg]
        e(f"v_mov_b32 v{CA}, v{a}")
        e(f"v_mov_b32 v{CB}, v{b}")
        if seg == "G1":
            srd(4, PW1, PW1 + 1, S * F * 2)
            srd(8, PWS, PWS + 1, S * D * 2, WS_H)
            e("s_lshl_b32 s26, s66, 2")
            e("s_bfe_u32 s27, s64, 0x20003")
            e("s_add_u32 s26, s26, s27")
            if "1" not in ROT:
                e("s_mov_b32 s26, 0")
            e(f"s_mul_i32 s20, s26, {64 * 3584}")
            e("s_lshl_b32 s21, s26, 16")
            e(f"s_mov_b32 s38, {64 * 3584}")
            e(f"s_mov_b32 s39, {64 * 1024}")
            e(f"s_mov_b32 s30, {S * 3584}")
        elif seg == "WO":
            srd(4, PWO, PWO + 1, D * D * 2)
            srd(8, PWS, PWS + 1, S * D * 2, WS_O)
            e("s_lshl_b32 s20, s36, 16")
            e("s_lshl_b32 s21, s36, 7")
            if "o" not in ROT:
                e("s_mov_b32 s20, 0")
                e("s_mov_b32 s21, 0")
            e(f"s_mov_b32 s38, {64 * 1024}")
            e("s_movk_i32 s39, 128")
            e(f"s_mov_b32 s30, {D * 1024}")
        else:
            srd(4, PWS, PWS + 1, D * F * 2, WS_U)
            srd(8, PW2, PW2 + 1, F * S * 2)
            e("s_mul_i32 s26, s36, 3")
            e("s_bfe_u32 s27, s34, 0x20003")
            e("s_add_u32 s26, s26, s27")
            if "2" not in ROT:
                e("s_mov_b32 s26, 0")
            e("s_lshl_b32 s20, s26, 7")
            e("s_lshl_b32 s21, s26, 18")
            e("s_movk_i32 s38, 128")
            e(f"s_mov_b32 s39, {64 * 4096}")
            e(f"s_movk_i32 s30, {F * 2}")

    def issue2():
        for (vo, sd, so, reg) in ((CA, 4, 20, 0), (CB, 8, 21, 8192)):
            e(f"s_add_u32 m0, s22, {reg}")
            e("s_nop 0")
            e(f"buffer_load_dwordx4 v{vo}, {sr(sd, 4)}, s{so} offen lds")
        e("s_add_u32 s20, s20, s38")
        e("s_add_u32 s21, s21, s39")
        e("s_cmp_ge_u32 s20, s30")
        e("s_cselect_b32 s20, 0, s20")
        e("s_cselect_b32 s21, 0, s21")
        e("s_add_u32 s22, s22, 16384")
        e(f"s_and_b32 s22, s22, 0x{RG * 16384 - 1:x}")

    e("s_cmp_ge_u32 s33, 28")
    e("s_cbranch_scc1 P_skip")
    base = 32
    emit_producer("PA", schedule(base + 36, DG, DG, hold=lambda k, b: k < base + 8 or b > base + XU), 2, issue2,
                  lambda k: "G1" if k < base else ("WO" if k < base + 8 else "G2"), switch, pre_barrier=True)
    e("s_endpgm")
    e("P_skip:")
    for _ in range(3):
        e("s_barrier")
    emit_producer("PB", schedule(36, DG, DG, hold=lambda k, b: k < 8 or b > XU), 2, issue2,
                  lambda k: "WO" if k < 8 else "G2", switch)
    e("s_endpgm")


AB = 131072


def consumer():
    R1, STG, NST1, BREG = 4, 40960, D // 64, 24576
    stamp()
    srd(72, PDBG, PDBG + 1, 256)
    srd(92, PWS, PWS + 1, 65536, WS_F)
    e("s_or_b32 s26, s2, s25")
    e("s_cmp_lg_u32 s26, 0")
    e("s_cbranch_scc1 tag_pub_done")
    e("s_memrealtime s[26:27]")
    e("s_waitcnt lgkmcnt(0)")
    e("s_or_b32 s26, s26, 1")
    e("v_mov_b32 v4, 0")
    e("v_mov_b32 v5, s26")
    e("s_mov_b64 exec, 1")
    e("buffer_store_dword v5, v4, s[72:75], 0 offen sc1")
    e("s_mov_b64 exec, -1")
    e("tag_pub_done:")
    srd(12, PWS, PWS + 1, S * D * 2, WS_H)
    srd(16, PWS, PWS + 1, S * D * 2, WS_O)
    srd(76, PWS, PWS + 1, S * 4, WS_G)
    srd(80, PGW, PGW + 1, D * 2)
    srd(68, PW1, PW1 + 1, S * F * 2)
    LX = 100
    e("s_lshl_b32 s26, s34, 3")
    e("s_lshl_b32 s27, s25, 1")
    e("s_add_u32 s26, s26, s27")
    e("s_lshl_b32 s27, s26, 10")
    e("v_lshlrev_b32 v3, 4, v1")
    e("v_add_u32 v98, s27, v3")
    e(f"buffer_load_dwordx4 {vr(LX, 4)}, v98, s[8:11], 0 offen")
    e(f"buffer_load_dwordx4 {vr(LX + 4, 4)}, v98, s[8:11], 0 offen offset:1024")
    e(f"buffer_load_dwordx4 {vr(LX + 8, 4)}, v3, s[80:83], 0 offen")
    TRA, DIRB = 20, 22
    CUR = 24
    tr_read_base(TRA, 1, "v2", 28)
    dir_read_base(DIRB, 1, 28)
    e(f"v_add_u32 v{DIRB}, {BREG}, v{DIRB}")
    e(f"v_xor_b32 v{DIRB + 1}, 64, v{DIRB}")
    e("s_waitcnt vmcnt(0)")
    XF, GW = 112, 128
    for j in range(4):
        unpack(GW + 2 * j, GW + 2 * j + 1, LX + 8 + j)
    e("s_mov_b32 s26, 0x3b000000")
    e("s_mov_b32 s27, 0x3727c5ac")
    e("s_mov_b32 s37, 0xbfb8aa3b")
    for row in range(2):
        x = XF + 8 * row
        for j in range(4):
            unpack(x + 2 * j, x + 2 * j + 1, LX + 4 * row + j)
        t = 136
        e(f"v_add_f32 v{t}, v{x}, v{x + 1}")
        for j in range(2, 8):
            e(f"v_add_f32 v{t}, v{t}, v{x + j}")
        wave_sum(t, 28)
        for j in range(4):
            e(f"v_mul_f32 v{t + 1}, v{x + 2 * j}, v{GW + 2 * j}")
            e(f"v_mul_f32 v{t + 2}, v{x + 2 * j + 1}, v{GW + 2 * j + 1}")
            e(f"v_cvt_pk_bf16_f32 v{t + 1}, v{t + 1}, v{t + 2}")
            unpack(t + 2, t + 3, t + 1)
            if j == 0:
                e(f"v_add_f32 v{t + 4}, v{t + 2}, v{t + 3}")
            else:
                e(f"v_add_f32 v{t + 4}, v{t + 4}, v{t + 2}")
                e(f"v_add_f32 v{t + 4}, v{t + 4}, v{t + 3}")
        wave_sum(t + 4, 29)
        e("s_nop 1")
        e(f"v_mov_b32 v{t}, s26")
        e(f"v_mul_f32 v{t}, s28, v{t}")
        e(f"v_mov_b32 v{t + 5}, 0")
        for j in range(8):
            e(f"v_sub_f32 v{t + 1}, v{x + j}, v{t}")
            e(f"v_fmac_f32 v{t + 5}, v{t + 1}, v{t + 1}")
        wave_sum(t + 5, 30)
        e("s_nop 1")
        e(f"v_mov_b32 v{t + 1}, s26")
        e(f"v_mul_f32 v{t + 1}, s30, v{t + 1}")
        e(f"v_cvt_pk_bf16_f32 v{t + 1}, v{t + 1}, v{t}")
        e(f"v_and_b32 v{t}, 0xffff0000, v{t + 1}")
        e(f"v_lshlrev_b32 v{t + 1}, 16, v{t + 1}")
        e(f"v_add_f32 v{t + 1}, s27, v{t + 1}")
        e(f"v_cvt_pk_bf16_f32 v{t + 1}, v{t + 1}, v{t + 1}")
        e(f"v_lshlrev_b32 v{t + 1}, 16, v{t + 1}")
        e(f"v_sqrt_f32 v{t + 1}, v{t + 1}")
        e("s_nop 0")
        e(f"v_cvt_pk_bf16_f32 v{t + 1}, v{t + 1}, v{t + 1}")
        e(f"v_lshlrev_b32 v{t + 1}, 16, v{t + 1}")
        e(f"v_rcp_f32 v{t + 1}, v{t + 1}")
        e("s_nop 0")
        ho = 144 + 4 * row
        for j in range(4):
            e(f"v_sub_f32 v{t + 2}, v{x + 2 * j}, v{t}")
            e(f"v_sub_f32 v{t + 3}, v{x + 2 * j + 1}, v{t}")
            e(f"v_cvt_pk_bf16_f32 v{t + 2}, v{t + 2}, v{t + 3}")
            unpack(t + 3, t + 4, t + 2)
            e(f"v_mul_f32 v{t + 3}, v{t + 3}, v{t + 1}")
            e(f"v_mul_f32 v{t + 4}, v{t + 4}, v{t + 1}")
            e(f"v_cvt_pk_bf16_f32 v{ho + j}, v{t + 3}, v{t + 4}")
        e(f"buffer_store_dwordx4 {vr(ho, 4)}, v98, s[12:15], 0 offen offset:{row * 1024} sc1")
        e(f"v_mov_b32 v{t + 2}, s29")
        e(f"v_cvt_pk_bf16_f32 v{t + 2}, v{t + 2}, v{t + 2}")
        e(f"v_lshlrev_b32 v{t + 2}, 16, v{t + 2}")
        e(f"v_mul_f32 v{t + 2}, s37, v{t + 2}")
        e(f"v_exp_f32 v{t + 2}, v{t + 2}")
        e("s_nop 0")
        e(f"v_add_f32 v{t + 2}, 1.0, v{t + 2}")
        e(f"v_rcp_f32 v{t + 2}, v{t + 2}")
        e("s_nop 0")
        e(f"v_cvt_pk_bf16_f32 v{t + 2}, v{t + 2}, v{t + 2}")
        e(f"v_lshlrev_b32 v{152 + row}, 16, v{t + 2}")
        e(f"v_lshrrev_b32 v{t + 3}, 8, v98")
        e("s_mov_b64 exec, 1")
        e(f"buffer_store_dword v{152 + row}, v{t + 3}, s[76:79], 0 offen offset:{row * 4} sc1")
        e("s_mov_b64 exec, -1")
    ACC = 96
    for X in range(3):
        for nt in range(5):
            if X == 0 and nt == 0:
                continue
            for r in range(4):
                e(f"v_mov_b32 v{ACC + (X * 5 + nt) * 4 + r}, 0")
    FS = (32, 64)
    e("s_mov_b32 s23, 0")

    def addr_update():
        e(f"v_add_u32 v{CUR}, s23, v{TRA}")
        e(f"v_add_u32 v{CUR + 1}, s23, v{DIRB}")
        e(f"v_add_u32 v{CUR + 2}, s23, v{DIRB + 1}")
        e(f"s_add_u32 s23, s23, {STG}")
        e(f"s_cmp_ge_u32 s23, {R1 * STG}")
        e("s_cselect_b32 s23, 0, s23")

    def reads(kk):
        st = kk
        L = []
        for X in range(3):
            for h in range(2):
                L.append(lambda X=X, h=h: e(
                    f"ds_read_b64_tr_b16 {vr(FS[st] + X * 4 + 2 * h, 2)}, v{CUR} offset:{X * 8192 + kk * 4096 + h * 512}"))
        for nt in range(5):
            L.append(lambda nt=nt: e(
                f"ds_read_b128 {vr(FS[st] + 12 + nt * 4, 4)}, v{CUR + 1 + kk} offset:{nt * 2048}"))
        return L

    def mfmas(st):
        L = []
        for nt in range(5):
            for X in range(3):
                if X == 0 and nt == 0:
                    continue
                L.append(lambda nt=nt, X=X: mfma(ACC + (X * 5 + nt) * 4, FS[st] + X * 4, FS[st] + 12 + nt * 4))
        return L

    def stage(first=False):
        e("s_barrier")
        addr_update()
        if first:
            for f in reads(0):
                f()
        else:
            interleave(mfmas(1), reads(0))
        e("s_waitcnt lgkmcnt(0)")
        interleave(mfmas(0), reads(1))
        e("s_waitcnt lgkmcnt(0)")

    stamp()
    stamp()
    stage(first=True)
    e("s_waitcnt vmcnt(0)")
    stage()
    get_tag(4)
    e("s_lshl_b32 s89, s34, 6")
    set_flag("s89", 4)
    e("s_mul_i32 s26, s34, 28672")
    e("s_lshl_b32 s27, s25, 13")
    e("s_add_u32 s26, s26, s27")
    e("v_lshlrev_b32 v161, 6, v1")
    e("v_add_u32 v161, s26, v161")
    e("v_add_u32 v160, 4096, v161")
    e("buffer_load_dword v162, v161, s[68:71], 0 offen")
    e("buffer_load_dword v162, v160, s[68:71], 0 offen")
    e("s_mov_b32 s24, 0")
    e("C1_loop:")
    stage()
    e("s_add_u32 s24, s24, 1")
    e(f"s_cmp_lt_u32 s24, {NST1 - 4}")
    e("s_cbranch_scc1 C1_loop")
    poll_issue(FL_H, 256, 4)
    stage()
    stage()
    stamp()
    poll(FL_H, 256, 4, early=True)
    stamp()
    e("s_barrier")
    for f in mfmas(1):
        f()
    e("v_and_b32 v3, 15, v1")
    e("v_lshrrev_b32 v9, 4, v1")
    e("v_lshlrev_b32 v10, 4, v3")
    e("v_and_b32 v11, 1, v9")
    e("v_lshl_add_u32 v10, v11, 3, v10")
    e("v_lshl_add_u32 v10, v2, 13, v10")
    e(f"v_add_u32 v10, {AB}, v10")
    e("v_lshrrev_b32 v11, 1, v9")
    e("v_lshl_add_u32 v12, v11, 10, v10")
    e("v_mul_u32_u24 v11, 1280, v11")
    e("v_add_u32 v13, v11, v10")
    e("s_nop 7")
    for X in range(3):
        for nt in range(5):
            if X == 0 and nt == 0:
                continue
            a = ACC + (X * 5 + nt) * 4
            pk = 14 + 2 * ((X * 5 + nt) % 2)
            e(f"v_cvt_pk_bf16_f32 v{pk}, v{a}, v{a + 1}")
            e(f"v_cvt_pk_bf16_f32 v{pk + 1}, v{a + 2}, v{a + 3}")
            if X == 0:
                e(f"ds_write_b64 v12, {vr(pk, 2)} offset:{(nt - 1) * 256}")
            else:
                e(f"ds_write_b64 v13, {vr(pk, 2)} offset:{(2048 if X == 1 else 4608) + nt * 256}")
    e("s_waitcnt lgkmcnt(0)")
    e("s_barrier")
    e("v_lshrrev_b32 v8, 4, v1")
    e("v_and_b32 v9, 15, v1")
    e("v_lshl_add_u32 v9, v2, 4, v9")
    e("v_lshlrev_b32 v10, 4, v9")
    e("v_lshl_add_u32 v10, v8, 13, v10")
    e(f"v_add_u32 v10, {AB}, v10")
    e("v_add_u32 v11, s35, v9")
    nb = [0]

    def bar():
        pass

    Q, KV, LG, PP, OA, TT = 16, 24, 88, 96, 100, 116
    for p in range(2):
        e(f"ds_read_b128 {vr(Q + 4 * p, 4)}, v10 offset:{p * 1024}")
    for w in range(8):
        for p in range(2):
            e(f"ds_read_b128 {vr(KV + 8 * w + 4 * p, 4)}, v10 offset:{2048 + p * 1280 + (16 - 2 * w) * 16}")
        if w == 5:
            e("s_waitcnt lgkmcnt(8)")
    for w in range(8):
        e(f"v_mov_b32 v{LG + w}, 0")
    e("s_waitcnt lgkmcnt(0)")
    bar()
    for j in range(8):
        for w in range(8):
            e(f"v_dot2_f32_bf16 v{LG + w}, v{Q + j}, v{KV + 8 * w + j}, v{LG + w}")
        if j % 3 == 2 or (FINE and j % 3 == 0):
            bar()
    e("s_nop 3")
    for w in range(8):
        for p in range(2):
            e(f"ds_read_b128 {vr(KV + 8 * w + 4 * p, 4)}, v10 offset:{4608 + p * 1280 + (16 - 2 * w) * 16}")
        if w == 5:
            e("s_waitcnt lgkmcnt(8)")
    bar()
    e("v_mov_b32 v12, 0xce6e0000")
    for u in range(4):
        e(f"v_cvt_pk_bf16_f32 v14, v{LG + 2 * u}, v{LG + 2 * u + 1}")
        unpack(LG + 2 * u, LG + 2 * u + 1, 14)
    for w in range(8):
        e(f"v_mul_f32 v{LG + w}, 0x3e800000, v{LG + w}")
    for w in range(1, 8):
        e(f"v_cmp_le_u32 vcc, {2 * w}, v11")
        e("s_nop 1")
        e(f"v_cndmask_b32 v{LG + w}, v12, v{LG + w}, vcc")
    bar()
    e(f"v_max3_f32 v13, v{LG}, v{LG + 1}, v{LG + 2}")
    e(f"v_max3_f32 v13, v13, v{LG + 3}, v{LG + 4}")
    e(f"v_max3_f32 v13, v13, v{LG + 5}, v{LG + 6}")
    e(f"v_max_f32 v13, v13, v{LG + 7}")
    e("s_mov_b32 s26, 0x3fb8aa3b")
    for w in range(8):
        e(f"v_sub_f32 v{LG + w}, v{LG + w}, v13")
        e(f"v_mul_f32 v{LG + w}, s26, v{LG + w}")
        e(f"v_exp_f32 v{LG + w}, v{LG + w}")
    e("s_nop 0")
    e(f"v_add_f32 v13, v{LG}, v{LG + 1}")
    for w in range(2, 8):
        e(f"v_add_f32 v13, v13, v{LG + w}")
    e("v_rcp_f32 v13, v13")
    e("s_nop 0")
    bar()
    for w in range(8):
        e(f"v_mul_f32 v{LG + w}, v{LG + w}, v13")
    for u in range(4):
        e(f"v_cvt_pk_bf16_f32 v{PP + u}, v{LG + 2 * u}, v{LG + 2 * u + 1}")
    for j in range(16):
        e(f"v_mov_b32 v{OA + j}, 0")
    e("s_mov_b32 s26, 0x05040100")
    e("s_mov_b32 s27, 0x07060302")
    e("s_waitcnt lgkmcnt(0)")
    bar()
    for u in range(4):
        for j in range(8):
            a = KV + 8 * (2 * u) + j
            b = KV + 8 * (2 * u + 1) + j
            e(f"v_perm_b32 v{TT + 2 * j}, v{b}, v{a}, s26")
            e(f"v_perm_b32 v{TT + 2 * j + 1}, v{b}, v{a}, s27")
        if FINE:
            bar()
        for j in range(16):
            e(f"v_dot2_f32_bf16 v{OA + j}, v{TT + j}, v{PP + u}, v{OA + j}")
        bar()
    e("s_nop 3")
    for j in range(8):
        e(f"v_cvt_pk_bf16_f32 v{TT + j}, v{OA + 2 * j}, v{OA + 2 * j + 1}")
    e(f"ds_write_b128 v10, {vr(TT, 4)}")
    e(f"ds_write_b128 v10, {vr(TT + 4, 4)} offset:1024")
    e("v_lshrrev_b32 v12, 3, v1")
    e("v_lshl_add_u32 v12, v2, 4, v12")
    e("v_bfe_u32 v13, v1, 1, 2")
    e("v_and_b32 v14, 1, v1")
    e("v_lshlrev_b32 v15, 4, v12")
    e("v_lshl_add_u32 v15, v13, 13, v15")
    e("v_lshl_add_u32 v15, v14, 10, v15")
    e(f"v_add_u32 v15, {AB}, v15")
    e("v_and_b32 v13, 7, v1")
    e("v_lshlrev_b32 v13, 4, v13")
    e("v_add_u32 v12, s35, v12")
    e("v_lshl_add_u32 v12, v12, 10, v13")
    e("s_lshl_b32 s26, s36, 7")
    e("v_add_u32 v12, s26, v12")
    e(f"v_add_u32 v13, {8 * 1024}, v12")
    e("s_waitcnt lgkmcnt(0)")
    e(f"ds_read_b128 {vr(TT, 4)}, v15")
    e(f"ds_read_b128 {vr(TT + 4, 4)}, v15 offset:128")
    e("s_waitcnt lgkmcnt(0)")
    e(f"buffer_store_dwordx4 {vr(TT, 4)}, v12, s[16:19], 0 offen sc1")
    e(f"buffer_store_dwordx4 {vr(TT + 4, 4)}, v13, s[16:19], 0 offen sc1")
    e("s_lshl_b32 s31, s35, 3")
    e(f"s_add_u32 s31, s31, {FL_O}")
    e(f"s_add_u32 s89, s89, {FL_O}")
    stamp()
    stamp()

    srd(12, PWS, PWS + 1, D * F * 2, WS_U)
    srd(16, PB1, PB1 + 1, F * 2)
    srd(84, POUT, POUT + 1, S * D * 2)
    srd(68, PB2, PB2 + 1, S * 2)
    e("v_and_b32 v26, 1, v2")
    e("v_lshrrev_b32 v27, 1, v2")
    TA, TB, DIA, DIB = 28, 30, 32, 34
    CU = 36
    for i in range(2):
        e(f"v_lshl_add_u32 v40, v26, 1, {i}")
        tr_read_base(TA + i, 1, "v40", 42)
        e(f"v_lshl_add_u32 v40, v27, 1, {i}")
        tr_read_base(TB + i, 1, "v40", 42)
        e(f"v_add_u32 v{TB + i}, 8192, v{TB + i}")
    dir_read_base(DIA, 1, 42)
    e(f"v_lshl_add_u32 v{DIB}, v27, 12, v{DIA}")
    e(f"v_add_u32 v{DIB}, 8192, v{DIB}")
    e(f"v_lshl_add_u32 v{DIA}, v26, 12, v{DIA}")
    e(f"v_xor_b32 v{DIA + 1}, 64, v{DIA}")
    e(f"v_xor_b32 v{DIB + 1}, 64, v{DIB}")
    ACCS = {"G1": 48, "G2": 48, "WO": 64}
    FG = (80, 112)
    T = 144
    B1, GB = 14, 20
    for i in range(32):
        e(f"v_mov_b32 v{48 + i}, 0")
    e("s_mov_b32 s23, 0")

    def g_addr(seg):
        ra, rb = {"G1": (TA, TB), "WO": (TA, DIB), "G2": (DIA, TB)}[seg]
        for i in range(2):
            e(f"v_add_u32 v{CU + i}, s23, v{ra + i}")
            e(f"v_add_u32 v{CU + 2 + i}, s23, v{rb + i}")
        e("s_add_u32 s23, s23, 16384")
        e(f"s_and_b32 s23, s23, 0x{RG * 16384 - 1:x}")

    def g_reads(st, seg):
        L = []
        kinds = {"G1": ("tr", "tr"), "WO": ("tr", "dir"), "G2": ("dir", "tr")}[seg]
        for kk in range(2):
            for side in range(2):
                fo = FG[st] + 16 * side
                cu = CU + 2 * side
                for i in range(2):
                    if kinds[side] == "tr":
                        for h in range(2):
                            L.append(lambda kk=kk, fo=fo, cu=cu, i=i, h=h: e(
                                f"ds_read_b64_tr_b16 {vr(fo + (kk * 2 + i) * 4 + 2 * h, 2)}, v{cu + i} offset:{kk * 4096 + h * 512}"))
                    else:
                        L.append(lambda kk=kk, fo=fo, cu=cu, i=i: e(
                            f"ds_read_b128 {vr(fo + (kk * 2 + i) * 4, 4)}, v{cu + kk} offset:{i * 2048}"))
        return L

    def g_mfmas(st, seg):
        acc = ACCS[seg]
        L = []
        for kk in range(2):
            for mt in range(2):
                for nt in range(2):
                    L.append(lambda kk=kk, mt=mt, nt=nt: mfma(acc + (mt * 2 + nt) * 4, FG[st] + (kk * 2 + mt) * 4,
                                                              FG[st] + 16 + (kk * 2 + nt) * 4))
        return L

    def g_half(st, seg, nxt):
        e("s_barrier")
        if nxt:
            g_addr(nxt)
            interleave(g_mfmas(st, seg), g_reads(1 - st, nxt))
            e("s_waitcnt lgkmcnt(0)")
        else:
            for f in g_mfmas(st, seg):
                f()

    _lp = [0]

    def g_run(k0, k1, seg, last_nxt):
        k = k0
        if k & 1 and k < k1:
            g_half(1, seg, seg)
            k += 1
        npairs = (k1 - k) // 2
        if npairs >= 2:
            lab = f"CG_loop{_lp[0]}"
            _lp[0] += 1
            e("s_mov_b32 s24, 0")
            e(f"{lab}:")
            g_half(0, seg, seg)
            g_half(1, seg, seg)
            e("s_add_u32 s24, s24, 1")
            e(f"s_cmp_lt_u32 s24, {npairs}")
            e(f"s_cbranch_scc1 {lab}")
            k += 2 * npairs
        while k < k1:
            g_half(k & 1, seg, seg)
            k += 1
        g_half(k1 & 1, seg, last_nxt)

    e("v_and_b32 v12, 15, v1")
    e("v_lshl_add_u32 v12, v27, 5, v12")
    e("v_add_u32 v12, s35, v12")
    e("v_lshlrev_b32 v13, 2, v12")
    e(f"buffer_load_dword v{GB}, v13, s[76:79], 0 offen")
    e(f"buffer_load_dword v{GB + 1}, v13, s[76:79], 0 offen offset:64")
    e("v_lshlrev_b32 v13, 1, v12")
    e(f"buffer_load_ushort v{GB + 2}, v13, s[68:71], 0 offen")
    e(f"buffer_load_ushort v{GB + 3}, v13, s[68:71], 0 offen offset:32")
    e("v_lshlrev_b32 v24, 10, v12")
    e("v_lshrrev_b32 v13, 4, v1")
    e("v_lshlrev_b32 v13, 3, v13")
    e("v_lshl_add_u32 v13, v26, 6, v13")
    e("s_lshl_b32 s26, s36, 7")
    e("v_add3_u32 v24, v24, v13, s26")
    e(f"v_add_u32 v25, {16 * 1024}, v24")
    e("s_cmp_ge_u32 s33, 28")
    e("s_cbranch_scc1 C_skip")
    e("v_add_u32 v9, s65, v13")
    e(f"buffer_load_dwordx2 {vr(B1, 2)}, v9, s[16:19], 0 offen")
    e(f"buffer_load_dwordx2 {vr(B1 + 2, 2)}, v9, s[16:19], 0 offen offset:32")
    e("s_barrier")
    g_addr("G1")
    for f in g_reads(0, "G1"):
        f()
    e("s_waitcnt lgkmcnt(0)")
    g_run(0, 3, "G1", "G1")
    e("s_waitcnt vmcnt(0)")
    g_half(0, "G1", "G1")
    set_flag("s89", 4)
    g_run(5, 7, "G1", "G1")
    stamp()
    srd(4, PW2, PW2 + 1, F * S * 2)
    srd(8, PWO, PWO + 1, D * D * 2)
    e("s_lshl_b32 s26, s64, 15")
    e("s_lshl_b32 s27, s25, 13")
    e("s_add_u32 s26, s26, s27")
    e("v_lshlrev_b32 v45, 6, v1")
    e("v_add_u32 v45, s26, v45")
    e("buffer_load_dword v47, v45, s[4:7], 0 offen")
    e("s_mul_i32 s26, s64, 2368")
    e("v_lshlrev_b32 v46, 6, v1")
    e("v_add_u32 v46, s26, v46")
    e("buffer_load_dword v47, v46, s[8:11], 0 offen")
    g_run(8, 15, "G1", "G1")
    stamp()
    e("v_add_u32 v46, 4096, v45")
    e("buffer_load_dword v47, v46, s[4:7], 0 offen")
    g_run(16, 19, "G1", "G1")
    poll_issue("s31", 8, 4)
    g_run(20, 22, "G1", "G1")
    stamp()
    poll("s31", 8, 4, early=True)
    stamp()
    g_run(23, 31, "G1", "WO")
    stamp()
    e("s_mov_b32 s26, 0x40135761")
    e("s_mov_b32 s27, 0x3dd2d3e8")
    e("v_and_b32 v8, 15, v1")
    e("v_lshl_add_u32 v8, v27, 5, v8")
    e("v_lshl_add_u32 v8, v8, 7, v13")
    e(f"v_add_u32 v8, {AB}, v8")
    e("v_lshrrev_b32 v9, 3, v1")
    e("v_lshl_add_u32 v9, v2, 4, v9")
    e("v_and_b32 v10, 7, v1")
    e("v_lshlrev_b32 v10, 4, v10")
    e("v_lshl_add_u32 v11, v9, 7, v10")
    e(f"v_add_u32 v11, {AB}, v11")
    e("s_lshl_b32 s37, s66, 6")
    e("v_add_u32 v9, s37, v9")
    e("s_movk_i32 s37, 3584")
    e("v_mul_lo_u32 v9, v9, s37")
    e("v_add3_u32 v9, v9, v10, s65")
    e(f"v_add_u32 v10, {8 * 3584}, v9")
    e("s_waitcnt vmcnt(0)")
    e("s_nop 7")
    A1 = ACCS["G1"]
    for mt in range(2):
        unpack(T + 8, T + 9, B1 + 2 * mt)
        unpack(T + 10, T + 11, B1 + 2 * mt + 1)
        for nt in range(2):
            a = A1 + (mt * 2 + nt) * 4
            e(f"v_cvt_pk_bf16_f32 v{T}, v{a}, v{a + 1}")
            e(f"v_cvt_pk_bf16_f32 v{T + 1}, v{a + 2}, v{a + 3}")
            unpack(T + 2, T + 3, T)
            unpack(T + 4, T + 5, T + 1)
            for r in range(4):
                e(f"v_add_f32 v{T + 2 + r}, v{T + 2 + r}, v{T + 8 + r}")
            e(f"v_cvt_pk_bf16_f32 v{T}, v{T + 2}, v{T + 3}")
            e(f"v_cvt_pk_bf16_f32 v{T + 1}, v{T + 4}, v{T + 5}")
            unpack(T + 2, T + 3, T)
            unpack(T + 4, T + 5, T + 1)
            for r in range(4):
                gelu(T + 2 + r, T + 6, 26, 27)
            o = T + 12 + (mt * 2 + nt) * 2
            e(f"v_cvt_pk_bf16_f32 v{o}, v{T + 2}, v{T + 3}")
            e(f"v_cvt_pk_bf16_f32 v{o + 1}, v{T + 4}, v{T + 5}")
            e(f"ds_write_b64 v8, {vr(o, 2)} offset:{nt * 2048 + mt * 32}")
    for i in range(16):
        e(f"v_mov_b32 v{A1 + i}, 0")
    e("s_lshl_b32 s89, s66, 5")
    e("s_lshr_b32 s26, s64, 3")
    e("s_add_u32 s89, s89, s26")
    e("s_lshl_b32 s89, s89, 6")
    e(f"s_add_u32 s89, s89, {FL_U}")
    stamp()
    e("s_waitcnt lgkmcnt(0)")
    g_half(0, "WO", "WO")
    e(f"ds_read_b128 {vr(T, 4)}, v11")
    e(f"ds_read_b128 {vr(T + 4, 4)}, v11 offset:1024")
    e("s_waitcnt lgkmcnt(0)")
    e(f"buffer_store_dwordx4 {vr(T, 4)}, v9, s[12:15], 0 offen sc1")
    e(f"buffer_store_dwordx4 {vr(T + 4, 4)}, v10, s[12:15], 0 offen sc1")
    g_half(1, "WO", "WO")
    e("s_waitcnt vmcnt(0)")
    stamp()
    g_half(0, "WO", "WO")
    set_flag("s89", 4)
    e("s_branch C_ph3")
    e("C_skip:")
    e("s_waitcnt vmcnt(0)")
    e("s_barrier")
    set_flag("s89", 4)
    poll("s31", 8, 4)
    e("s_barrier")
    e("s_barrier")
    g_addr("WO")
    for f in g_reads(0, "WO"):
        f()
    e("s_waitcnt lgkmcnt(0)")
    g_half(0, "WO", "WO")
    g_half(1, "WO", "WO")
    g_half(0, "WO", "WO")
    e("C_ph3:")
    e("s_lshl_b32 s91, s36, 11")
    e(f"s_add_u32 s91, s91, {FL_U}")
    assert XU >= 4
    if XU > 4:
        g_run(3, XU - 2, "WO", "WO")
    stamp()
    poll("s91", 28, 4)
    stamp()
    g_run(XU - 1, 7, "WO", "G2")
    g_run(8, 35, "G2", None)
    stamp()
    e("s_waitcnt vmcnt(0)")
    e("s_nop 7")
    ACC1, ACC2 = ACCS["G2"], ACCS["WO"]
    for nt in range(2):
        e(f"v_sub_f32 v{T + 12}, 1.0, v{GB + nt}")
        e(f"v_cvt_pk_bf16_f32 v{T + 12}, v{T + 12}, v{T + 12}")
        e(f"v_lshlrev_b32 v{T + 12}, 16, v{T + 12}")
        e(f"v_lshlrev_b32 v{T + 13}, 16, v{GB + 2 + nt}")
        for mt in range(2):
            a1 = ACC1 + (mt * 2 + nt) * 4
            a2 = ACC2 + (mt * 2 + nt) * 4
            e(f"v_cvt_pk_bf16_f32 v{T}, v{a1}, v{a1 + 1}")
            e(f"v_cvt_pk_bf16_f32 v{T + 1}, v{a1 + 2}, v{a1 + 3}")
            unpack(T + 2, T + 3, T)
            unpack(T + 4, T + 5, T + 1)
            for r in range(4):
                e(f"v_add_f32 v{T + 2 + r}, v{T + 2 + r}, v{T + 13}")
            e(f"v_cvt_pk_bf16_f32 v{T}, v{T + 2}, v{T + 3}")
            e(f"v_cvt_pk_bf16_f32 v{T + 1}, v{T + 4}, v{T + 5}")
            unpack(T + 2, T + 3, T)
            unpack(T + 4, T + 5, T + 1)
            for r in range(4):
                e(f"v_mul_f32 v{T + 2 + r}, v{T + 2 + r}, v{T + 12}")
            e(f"v_cvt_pk_bf16_f32 v{T}, v{T + 2}, v{T + 3}")
            e(f"v_cvt_pk_bf16_f32 v{T + 1}, v{T + 4}, v{T + 5}")
            unpack(T + 2, T + 3, T)
            unpack(T + 4, T + 5, T + 1)
            e(f"v_cvt_pk_bf16_f32 v{T}, v{a2}, v{a2 + 1}")
            e(f"v_cvt_pk_bf16_f32 v{T + 1}, v{a2 + 2}, v{a2 + 3}")
            unpack(T + 6, T + 7, T)
            unpack(T + 8, T + 9, T + 1)
            for r in range(4):
                e(f"v_mul_f32 v{T + 6 + r}, v{T + 6 + r}, v{GB + nt}")
            e(f"v_cvt_pk_bf16_f32 v{T}, v{T + 6}, v{T + 7}")
            e(f"v_cvt_pk_bf16_f32 v{T + 1}, v{T + 8}, v{T + 9}")
            unpack(T + 6, T + 7, T)
            unpack(T + 8, T + 9, T + 1)
            for r in range(4):
                e(f"v_add_f32 v{T + 2 + r}, v{T + 2 + r}, v{T + 6 + r}")
            o = T + 16 + (nt * 2 + mt) * 2
            e(f"v_cvt_pk_bf16_f32 v{o}, v{T + 2}, v{T + 3}")
            e(f"v_cvt_pk_bf16_f32 v{o + 1}, v{T + 4}, v{T + 5}")
            e(f"buffer_store_dwordx2 {vr(o, 2)}, v{24 + nt}, s[84:87], 0 offen offset:{mt * 32}")
    stamp()
    stamp_dump()


def main():
    hdr = [
        "; Gated mix of dilated sliding-window attention and MLP-Mixer token mixing (gfx950).",
        "; Generated by gen/gen3.py.  Workspace: h @0, o @2MiB, u @4MiB, g @6MiB; counters in d_debug.",
        "; @launch grid=(256,1,1) block=(768,1,1) lds=163840",
        '.amdgcn_target "amdgcn-amd-amdhsa--gfx950"',
    ]
    gen()
    txt = "\n".join(hdr + [l for l in common.out if l.strip() != ""]) + "\n"
    if os.environ.get("NOSC1"):
        txt = "\n".join((l.replace(" sc1", "") if "buffer_store" in l else l) for l in txt.split("\n"))
    path = sys.argv[1] if len(sys.argv) > 1 else f"cdna_kernels/{NAME}.s"
    open(path, "w").write(txt)


if __name__ == "__main__":
    main()
```

```python
import os
import sys

sys.path.insert(0, os.path.dirname(os.path.abspath(__file__)))
from common import *
import common

KNAME = NAME + "_kernel"
RG = 8
DG = int(os.environ.get("DG", 7))
XU = int(os.environ.get("XU", 4))
WS_F = 8 << 20
FL_H, FL_O, FL_U = 0, 16384, 32768
SPIN = 200000
CODE_KB = 32
FINE = bool(os.environ.get('FINE'))
ROT = os.environ.get("ROT", "q1o2")

PX, PWQKV, PWO, PW1, PB1, PW2, PB2, PGW, POUT, PDBG, PWS = 40, 42, 44, 48, 50, 52, 54, 56, 58, 60, 62


STAMP = os.environ.get("STAMP", "")
_sn = [0]


def stamp():
    if not STAMP:
        return
    if STAMP == "dbg":
        k = _sn[0]
        _sn[0] += 1
        sel = [0, 1, 3, 4, 5, 7, 8, 9, 11, 12, 14, 15, 16, 17]
        if k not in sel:
            return
        e(f"s_cmp_lg_u32 s2, {os.environ.get('SWG', '0')}")
        e(f"s_cbranch_scc1 st_skip{k}")
        e("s_cmp_lg_u32 s25, 0")
        e(f"s_cbranch_scc1 st_skip{k}")
        e("s_memrealtime s[96:97]")
        e("s_waitcnt lgkmcnt(0)")
        e(f"v_mov_b32 v164, {4 * (1 + sel.index(k))}")
        e("v_mov_b32 v165, s96")
        e("s_mov_b64 exec, 1")
        e(f"global_store_dword v164, v165, s[{PDBG}:{PDBG + 1}]")
        e("s_mov_b64 exec, -1")
        e(f"st_skip{k}:")
        return
    if _sn[0] == 0:
        e(f"s_add_u32 s100, s{PWS}, 0x1000000")
        e(f"s_addc_u32 s101, s{PWS + 1}, 0")
        e("s_lshl_b32 s99, s2, 2")
        e("s_add_u32 s99, s99, s25")
        e("s_lshl_b32 s99, s99, 8")
    e("s_memrealtime s[96:97]")
    e("s_waitcnt lgkmcnt(0)")
    e("v_mov_b32 v164, s99")
    e("v_mov_b32 v165, s96")
    e("s_mov_b64 exec, 1")
    e(f"global_store_dword v164, v165, s[100:101] offset:{4 * _sn[0]}")
    e("s_mov_b64 exec, -1")
    _sn[0] += 1


def stamp_dump():
    pass


def interleave(mf, rd):
    n, m = len(mf), len(rd)
    k = 0
    for i, f in enumerate(mf):
        want = (m * (i + 1) + n - 1) // n
        while k < want:
            rd[k]()
            k += 1
        f()
    while k < m:
        rd[k]()
        k += 1


def schedule(N, D, D0, hold=None, cap=2):
    steps = []
    issued = 0
    for b in range(N + 1):
        ks = []
        lim = min(N, b + min(D, D0 + b))
        while issued < lim and (b == 0 or len(ks) < cap) and (hold is None or hold(issued, b)):
            ks.append(issued)
            issued += 1
        steps.append((ks, max(issued - b - 1, 0)))
    return steps


def emit_producer(tag, steps, ND, issue, seg_of, switch, pre_barrier=False):
    cur_seg = [None]
    pre = [pre_barrier]

    def one(ks, rem):
        for n_, k in enumerate(ks):
            if seg_of(k) != cur_seg[0]:
                cur_seg[0] = seg_of(k)
                switch(cur_seg[0])
            issue()
            if pre[0] and n_ == 1:
                e("s_barrier")
                pre[0] = False
        e(f"s_waitcnt vmcnt({ND * rem})")
        e("s_barrier")

    i = 0
    while i < len(steps):
        ks, rem = steps[i]
        j = i
        if len(ks) == 1 and seg_of(ks[0]) == cur_seg[0]:
            while (j + 1 < len(steps) and len(steps[j + 1][0]) == 1 and steps[j + 1][1] == rem
                   and seg_of(steps[j + 1][0][0]) == cur_seg[0]):
                j += 1
        cnt = j - i + 1
        if cnt >= 3:
            e("s_mov_b32 s24, 0")
            e(f"{tag}_ploop{i}:")
            one(ks, rem)
            e("s_add_u32 s24, s24, 1")
            e(f"s_cmp_lt_u32 s24, {cnt}")
            e(f"s_cbranch_scc1 {tag}_ploop{i}")
            i = j + 1
        else:
            one(ks, rem)
            i += 1


_pl = [0]
NAUX = int(os.environ.get('NAUX', 16))


def set_flag(off_sgpr, vt):
    k = _pl[0]
    _pl[0] += 1
    e("s_cmp_lg_u32 s25, 0")
    e(f"s_cbranch_scc1 flag_done{k}")
    e(f"v_mov_b32 v{vt}, {off_sgpr}")
    e(f"v_mov_b32 v{vt + 1}, s88")
    e("s_mov_b64 exec, 1")
    e(f"buffer_store_dword v{vt + 1}, v{vt}, s[92:95], 0 offen sc1")
    e("s_mov_b64 exec, -1")
    e(f"flag_done{k}:")


def get_tag(vt):
    k = _pl[0]
    _pl[0] += 1
    e("s_cmp_lg_u32 s25, 0")
    e(f"s_cbranch_scc1 tag_done{k}")
    e(f"v_mov_b32 v{vt}, 0")
    e("s_mov_b32 s90, 0")
    e(f"tag_loop{k}:")
    e(f"buffer_load_dword v{vt + 1}, v{vt}, s[72:75], 0 offen sc1")
    e("s_waitcnt vmcnt(0)")
    e(f"v_readfirstlane_b32 s88, v{vt + 1}")
    e("s_add_u32 s90, s90, 1")
    e(f"s_cmp_ge_u32 s90, {SPIN}")
    e(f"s_cbranch_scc1 tag_done{k}")
    e("s_cmp_lg_u32 s88, 0")
    e(f"s_cbranch_scc1 tag_done{k}")
    e("s_sleep 1")
    e(f"s_branch tag_loop{k}")
    e(f"tag_done{k}:")


def poll_addr(off, n, vt):
    if n < 64:
        e(f"v_min_u32 v{vt}, {n - 1}, v1")
    else:
        e(f"v_mov_b32 v{vt}, v1")
    e(f"v_lshlrev_b32 v{vt}, 6, v{vt}")
    e(f"v_add_u32 v{vt}, {off}, v{vt}")


def poll_loads(n, vt):
    for i in range((n + 63) // 64):
        if i:
            e(f"v_add_u32 v{vt + 1}, {4096 * i}, v{vt}")
        e(f"buffer_load_dword v{vt + 2 + i}, v{vt + (1 if i else 0)}, s[92:95], 0 offen sc1")


def poll_issue(off, n, vt):
    k = _pl[0]
    _pl[0] += 1
    poll_addr(off, n, vt)
    e("s_cmp_lg_u32 s25, 0")
    e(f"s_cbranch_scc1 polli_done{k}")
    poll_loads(n, vt)
    e(f"polli_done{k}:")


def poll(off, n, vt, early=False):
    k = _pl[0]
    _pl[0] += 1
    nl = (n + 63) // 64
    e("s_cmp_lg_u32 s25, 0")
    e(f"s_cbranch_scc1 poll_done{k}")
    e("s_mov_b32 s90, 0")
    if early:
        e(f"s_branch poll_chk{k}")
    else:
        poll_addr(off, n, vt)
    e(f"poll_loop{k}:")
    poll_loads(n, vt)
    e(f"poll_chk{k}:")
    e("s_waitcnt vmcnt(0)")
    e(f"v_cmp_ne_u32 vcc, s88, v{vt + 2}")
    for i in range(1, nl):
        e(f"v_cmp_ne_u32 s[96:97], s88, v{vt + 2 + i}")
        e("s_or_b64 vcc, vcc, s[96:97]")
    e("s_add_u32 s90, s90, 1")
    e(f"s_cmp_ge_u32 s90, {SPIN}")
    e(f"s_cbranch_scc1 poll_done{k}")
    e("s_cmp_eq_u64 vcc, 0")
    e(f"s_cbranch_scc1 poll_done{k}")
    e(f"s_sleep {os.environ.get('SLP', 2)}")
    e(f"s_branch poll_loop{k}")
    e(f"poll_done{k}:")


def gen():
    kernel_begin(KNAME)
    e("s_cmp_ge_u32 s2, 256")
    e("s_cbranch_scc1 L_done")
    e("s_load_dwordx16 s[40:55], s[0:1], 0")
    e("s_load_dwordx8 s[56:63], s[0:1], 64")
    e("v_and_b32 v1, 63, v0")
    e("v_lshrrev_b32 v3, 6, v0")
    e("v_subrev_u32 v2, 4, v3")
    e("v_cmp_gt_u32 vcc, 4, v3")
    e("s_nop 1")
    e("v_cndmask_b32 v2, v2, v3, vcc")
    e("s_and_b32 s32, s2, 7")
    e("s_lshr_b32 s33, s2, 3")
    e("s_lshl_b32 s34, s32, 5")
    e("s_add_u32 s34, s34, s33")
    e("s_lshr_b32 s35, s34, 3")
    e("s_lshl_b32 s35, s35, 6")
    e("s_and_b32 s36, s34, 7")
    e("s_mul_i32 s64, s32, 28")
    e("s_add_u32 s64, s64, s33")
    e("s_lshr_b32 s65, s64, 3")
    e("s_lshl_b32 s65, s65, 7")
    e("s_and_b32 s66, s64, 7")
    e("v_readfirstlane_b32 s25, v2")
    e("v_readfirstlane_b32 s27, v3")
    e("s_waitcnt lgkmcnt(0)")
    srd(8, PX, PX + 1, S * D * 2)
    e("s_cmp_lt_u32 s27, 4")
    e("s_cbranch_scc1 L_consumer")
    producer()
    e("L_consumer:")
    consumer()
    e("L_done:")
    e("s_endpgm")
    e("L_code_end:")
    kernel_desc(KNAME, 168)


def producer():
    R1, STG, NST1, BREG = 4, 40960, D // 64, 24576
    if os.environ.get("CODEPF", "1") != "0":
        e("s_cmp_lg_u32 s25, 7")
        e("s_cbranch_scc1 code_pf_done")
        e("s_getpc_b64 s[68:69]")
        e("code_pf_pc:")
        e(f"s_sub_u32 s68, s68, code_pf_pc-{KNAME}")
        e("s_subb_u32 s69, s69, 0")
        e("s_and_b32 s69, s69, 0xffff")
        e(f"s_mov_b32 s70, L_code_end-{KNAME}")
        e("s_mov_b32 s71, 0x00020000")
        e("v_lshlrev_b32 v40, 6, v1")
        for i in range(CODE_KB // 4):
            if i:
                e("v_add_u32 v40, 4096, v40")
            e("buffer_load_dword v41, v40, s[68:71], 0 offen")
        e("code_pf_done:")
    srd(4, PWQKV, PWQKV + 1, D * 3 * D * 2)
    DA, DB = 4, 6
    e("v_lshrrev_b32 v12, 3, v1")
    e("v_and_b32 v13, 7, v1")
    e("v_bfe_u32 v14, v1, 4, 1")
    e("v_and_b32 v15, 1, v2")
    e("v_lshl_or_b32 v14, v15, 1, v14")
    e("v_lshlrev_b32 v14, 1, v14")
    e("v_xor_b32 v14, v13, v14")
    e("v_lshlrev_b32 v14, 4, v14")
    e("v_lshl_add_u32 v16, v2, 3, v12")
    e("v_bfe_u32 v17, v16, 1, 3")
    e("v_xor_b32 v17, v13, v17")
    e("v_lshlrev_b32 v17, 4, v17")
    e("s_lshl_b32 s26, s36, 7")
    e("s_movk_i32 s27, 3072")
    e("v_mul_lo_u32 v18, v16, s27")
    e(f"v_add3_u32 v{DA}, v18, v14, s26")
    for j in range(2):
        e("v_lshl_add_u32 v15, v2, 4, v12")
        e(f"v_add_u32 v15, {8 * j}, v15")
        e("v_bfe_u32 v19, v15, 1, 3")
        e("v_xor_b32 v19, v13, v19")
        e("v_lshlrev_b32 v19, 4, v19")
        e("s_sub_u32 s27, s35, 16")
        e("v_add_u32 v18, s27, v15")
        e("v_max_i32 v18, 0, v18")
        e("v_lshl_add_u32 v18, v18, 10, v19")
        e("v_cmp_gt_u32 vcc, 80, v15")
        e(f"v_mov_b32 v19, 0x{BIG:x}")
        e("s_nop 0")
        e(f"v_cndmask_b32 v{DB + j}, v19, v18, vcc")
    e("s_lshl_b32 s22, s25, 10")
    e("s_lshl_b32 s28, s25, 11")
    e(f"s_add_u32 s28, s28, {BREG}")
    e("s_bfe_u32 s26, s34, 0x20003")
    e("s_lshl_b32 s26, s26, 1")
    e("s_add_u32 s26, s26, s36")
    e("s_and_b32 s26, s26, 7")
    e(f"s_mul_i32 s20, s26, {64 * 3072}")
    e("s_lshl_b32 s21, s26, 7")
    e("s_mov_b32 s29, 0")

    def issue1():
        for j in range(2):
            e("s_add_u32 s26, s28, s29")
            e(f"s_add_u32 m0, s26, {j * 1024}")
            e("s_nop 0")
            e(f"buffer_load_dwordx4 v{DB + j}, s[8:11], s21 offen lds")
        for X in range(3):
            e("s_add_u32 s26, s22, s29")
            e(f"s_add_u32 m0, s26, {X * 7168}")
            e("s_nop 0")
            e(f"buffer_load_dwordx4 v{DA}, s[4:7], s20 offen offset:{X * 1024} lds")
        e(f"s_add_u32 s20, s20, {64 * 3072}")
        e("s_add_u32 s21, s21, 128")
        e("s_cmp_ge_u32 s21, 1024")
        e("s_cselect_b32 s20, 0, s20")
        e("s_cselect_b32 s21, 0, s21")
        e(f"s_add_u32 s29, s29, {STG}")
        e(f"s_cmp_ge_u32 s29, {R1 * STG}")
        e("s_cselect_b32 s29, 0, s29")

    V = {"G1": (20, 21), "WO": (22, 23), "G2": (24, 25)}
    e("s_movk_i32 s26, 3584")
    e("v_mul_lo_u32 v18, v16, s26")
    e(f"v_add3_u32 v{V['G1'][0]}, v18, v14, s65")
    e("v_lshlrev_b32 v18, 10, v16")
    e("s_lshl_b32 s26, s66, 7")
    e(f"v_add3_u32 v{V['G1'][1]}, v18, v14, s26")
    e("s_lshl_b32 s26, s36, 7")
    e(f"v_add3_u32 v{V['WO'][0]}, v18, v14, s26")
    e("v_add_u32 v18, s35, v16")
    e("v_lshlrev_b32 v18, 10, v18")
    e(f"v_add_u32 v{V['WO'][1]}, v18, v17")
    e("s_lshl_b32 s26, s36, 6")
    e("v_add_u32 v18, s26, v16")
    e("s_movk_i32 s26, 3584")
    e("v_mul_lo_u32 v18, v18, s26")
    e(f"v_add_u32 v{V['G2'][0]}, v18, v17")
    e("v_lshlrev_b32 v18, 12, v16")
    e("s_lshl_b32 s26, s35, 1")
    e(f"v_add3_u32 v{V['G2'][1]}, v18, v14, s26")

    emit_producer("P1", schedule(NST1, 3, 2), 5, issue1, lambda k: "Q", lambda s: None)

    CA, CB = 32, 34
    e("s_lshl_b32 s22, s25, 10")

    def switch(seg):
        a, b = V[seg]
        e(f"v_mov_b32 v{CA}, v{a}")
        e(f"v_mov_b32 v{CB}, v{b}")
        if seg == "G1":
            srd(4, PW1, PW1 + 1, S * F * 2)
            srd(8, PWS, PWS + 1, S * D * 2, WS_H)
            e("s_lshl_b32 s26, s66, 2")
            e("s_bfe_u32 s27, s64, 0x20003")
            e("s_add_u32 s26, s26, s27")
            if "1" not in ROT:
                e("s_mov_b32 s26, 0")
            e(f"s_mul_i32 s20, s26, {64 * 3584}")
            e("s_lshl_b32 s21, s26, 16")
            e(f"s_mov_b32 s38, {64 * 3584}")
            e(f"s_mov_b32 s39, {64 * 1024}")
            e(f"s_mov_b32 s30, {S * 3584}")
        elif seg == "WO":
            srd(4, PWO, PWO + 1, D * D * 2)
            srd(8, PWS, PWS + 1, S * D * 2, WS_O)
            e("s_lshl_b32 s20, s36, 16")
            e("s_lshl_b32 s21, s36, 7")
            if "o" not in ROT:
                e("s_mov_b32 s20, 0")
                e("s_mov_b32 s21, 0")
            e(f"s_mov_b32 s38, {64 * 1024}")
            e("s_movk_i32 s39, 128")
            e(f"s_mov_b32 s30, {D * 1024}")
        else:
            srd(4, PWS, PWS + 1, D * F * 2, WS_U)
            srd(8, PW2, PW2 + 1, F * S * 2)
            e("s_mul_i32 s26, s36, 3")
            e("s_bfe_u32 s27, s34, 0x20003")
            e("s_add_u32 s26, s26, s27")
            if "2" not in ROT:
                e("s_mov_b32 s26, 0")
            e("s_lshl_b32 s20, s26, 7")
            e("s_lshl_b32 s21, s26, 18")
            e("s_movk_i32 s38, 128")
            e(f"s_mov_b32 s39, {64 * 4096}")
            e(f"s_movk_i32 s30, {F * 2}")

    def issue2():
        for (vo, sd, so, reg) in ((CA, 4, 20, 0), (CB, 8, 21, 8192)):
            e(f"s_add_u32 m0, s22, {reg}")
            e("s_nop 0")
            e(f"buffer_load_dwordx4 v{vo}, {sr(sd, 4)}, s{so} offen lds")
        if not os.environ.get("NOADV"):
            e("s_add_u32 s20, s20, s38")
        if not (os.environ.get("NOADV") or os.environ.get("NOADVB")):
            e("s_add_u32 s21, s21, s39")
        e("s_cmp_ge_u32 s20, s30")
        e("s_cselect_b32 s20, 0, s20")
        e("s_cselect_b32 s21, 0, s21")
        e("s_add_u32 s22, s22, 16384")
        e(f"s_and_b32 s22, s22, 0x{RG * 16384 - 1:x}")

    e("s_cmp_ge_u32 s33, 28")
    e("s_cbranch_scc1 P_skip")
    base = 32
    emit_producer("PA", schedule(base + 36, DG, DG, hold=lambda k, b: k < base + 8 or b > base + XU), 2, issue2,
                  lambda k: "G1" if k < base else ("WO" if k < base + 8 else "G2"), switch, pre_barrier=True)
    e("s_endpgm")
    e("P_skip:")
    for _ in range(3):
        e("s_barrier")
    emit_producer("PB", schedule(36, DG, DG, hold=lambda k, b: k < 8 or b > XU), 2, issue2,
                  lambda k: "WO" if k < 8 else "G2", switch)
    e("s_endpgm")


AB = 131072


def consumer():
    R1, STG, NST1, BREG = 4, 40960, D // 64, 24576
    stamp()
    srd(72, PDBG, PDBG + 1, 256)
    srd(92, PWS, PWS + 1, 65536, WS_F)
    e("s_or_b32 s26, s2, s25")
    e("s_cmp_lg_u32 s26, 0")
    e("s_cbranch_scc1 tag_pub_done")
    e("s_memrealtime s[26:27]")
    e("s_waitcnt lgkmcnt(0)")
    e("s_or_b32 s26, s26, 1")
    e("v_mov_b32 v4, 0")
    e("v_mov_b32 v5, s26")
    e("s_mov_b64 exec, 1")
    e("buffer_store_dword v5, v4, s[72:75], 0 offen sc1")
    e("s_mov_b64 exec, -1")
    e("tag_pub_done:")
    srd(12, PWS, PWS + 1, S * D * 2, WS_H)
    srd(16, PWS, PWS + 1, S * D * 2, WS_O)
    srd(76, PWS, PWS + 1, S * 4, WS_G)
    srd(80, PGW, PGW + 1, D * 2)
    srd(68, PW1, PW1 + 1, S * F * 2)
    LX = 100
    e("s_lshl_b32 s26, s34, 3")
    e("s_lshl_b32 s27, s25, 1")
    e("s_add_u32 s26, s26, s27")
    e("s_lshl_b32 s27, s26, 10")
    e("v_lshlrev_b32 v3, 4, v1")
    e("v_add_u32 v98, s27, v3")
    e(f"buffer_load_dwordx4 {vr(LX, 4)}, v98, s[8:11], 0 offen")
    e(f"buffer_load_dwordx4 {vr(LX + 4, 4)}, v98, s[8:11], 0 offen offset:1024")
    e(f"buffer_load_dwordx4 {vr(LX + 8, 4)}, v3, s[80:83], 0 offen")
    NPFQ = 3 if os.environ.get("QPF", "0") != "0" else 0
    if NPFQ:
        srd(84, PWQKV, PWQKV + 1, D * 3 * D * 2)
        e("s_lshl_b32 s26, s33, 2")
        e("s_add_u32 s26, s26, s25")
        e("s_mul_i32 s26, s26, 12288")
        e("v_lshlrev_b32 v161, 6, v1")
        e("v_add_u32 v161, s26, v161")
        for i in range(3):
            if i:
                e("v_add_u32 v161, 4096, v161")
            e("buffer_load_dword v162, v161, s[84:87], 0 offen")
    TRA, DIRB = 20, 22
    CUR = 24
    tr_read_base(TRA, 1, "v2", 28)
    dir_read_base(DIRB, 1, 28)
    e(f"v_add_u32 v{DIRB}, {BREG}, v{DIRB}")
    e(f"v_xor_b32 v{DIRB + 1}, 64, v{DIRB}")
    e(f"s_waitcnt vmcnt({NPFQ})")
    XF, GW = 112, 128
    for j in range(4):
        unpack(GW + 2 * j, GW + 2 * j + 1, LX + 8 + j)
    e("s_mov_b32 s26, 0x3b000000")
    e("s_mov_b32 s27, 0x3727c5ac")
    e("s_mov_b32 s37, 0xbfb8aa3b")
    for row in range(2):
        x = XF + 8 * row
        for j in range(4):
            unpack(x + 2 * j, x + 2 * j + 1, LX + 4 * row + j)
        t = 136
        e(f"v_add_f32 v{t}, v{x}, v{x + 1}")
        for j in range(2, 8):
            e(f"v_add_f32 v{t}, v{t}, v{x + j}")
        wave_sum(t, 28)
        for j in range(4):
            e(f"v_mul_f32 v{t + 1}, v{x + 2 * j}, v{GW + 2 * j}")
            e(f"v_mul_f32 v{t + 2}, v{x + 2 * j + 1}, v{GW + 2 * j + 1}")
            e(f"v_cvt_pk_bf16_f32 v{t + 1}, v{t + 1}, v{t + 2}")
            unpack(t + 2, t + 3, t + 1)
            if j == 0:
                e(f"v_add_f32 v{t + 4}, v{t + 2}, v{t + 3}")
            else:
                e(f"v_add_f32 v{t + 4}, v{t + 4}, v{t + 2}")
                e(f"v_add_f32 v{t + 4}, v{t + 4}, v{t + 3}")
        wave_sum(t + 4, 29)
        e("s_nop 1")
        e(f"v_mov_b32 v{t}, s26")
        e(f"v_mul_f32 v{t}, s28, v{t}")
        e(f"v_mov_b32 v{t + 5}, 0")
        for j in range(8):
            e(f"v_sub_f32 v{t + 1}, v{x + j}, v{t}")
            e(f"v_fmac_f32 v{t + 5}, v{t + 1}, v{t + 1}")
        wave_sum(t + 5, 30)
        e("s_nop 1")
        e(f"v_mov_b32 v{t + 1}, s26")
        e(f"v_mul_f32 v{t + 1}, s30, v{t + 1}")
        e(f"v_cvt_pk_bf16_f32 v{t + 1}, v{t + 1}, v{t}")
        e(f"v_and_b32 v{t}, 0xffff0000, v{t + 1}")
        e(f"v_lshlrev_b32 v{t + 1}, 16, v{t + 1}")
        e(f"v_add_f32 v{t + 1}, s27, v{t + 1}")
        e(f"v_cvt_pk_bf16_f32 v{t + 1}, v{t + 1}, v{t + 1}")
        e(f"v_lshlrev_b32 v{t + 1}, 16, v{t + 1}")
        e(f"v_sqrt_f32 v{t + 1}, v{t + 1}")
        e("s_nop 0")
        e(f"v_cvt_pk_bf16_f32 v{t + 1}, v{t + 1}, v{t + 1}")
        e(f"v_lshlrev_b32 v{t + 1}, 16, v{t + 1}")
        e(f"v_rcp_f32 v{t + 1}, v{t + 1}")
        e("s_nop 0")
        ho = 144 + 4 * row
        for j in range(4):
            e(f"v_sub_f32 v{t + 2}, v{x + 2 * j}, v{t}")
            e(f"v_sub_f32 v{t + 3}, v{x + 2 * j + 1}, v{t}")
            e(f"v_cvt_pk_bf16_f32 v{t + 2}, v{t + 2}, v{t + 3}")
            unpack(t + 3, t + 4, t + 2)
            e(f"v_mul_f32 v{t + 3}, v{t + 3}, v{t + 1}")
            e(f"v_mul_f32 v{t + 4}, v{t + 4}, v{t + 1}")
            e(f"v_cvt_pk_bf16_f32 v{ho + j}, v{t + 3}, v{t + 4}")
        e(f"buffer_store_dwordx4 {vr(ho, 4)}, v98, s[12:15], 0 offen offset:{row * 1024} sc1")
        e(f"v_mov_b32 v{t + 2}, s29")
        e(f"v_cvt_pk_bf16_f32 v{t + 2}, v{t + 2}, v{t + 2}")
        e(f"v_lshlrev_b32 v{t + 2}, 16, v{t + 2}")
        e(f"v_mul_f32 v{t + 2}, s37, v{t + 2}")
        e(f"v_exp_f32 v{t + 2}, v{t + 2}")
        e("s_nop 0")
        e(f"v_add_f32 v{t + 2}, 1.0, v{t + 2}")
        e(f"v_rcp_f32 v{t + 2}, v{t + 2}")
        e("s_nop 0")
        e(f"v_cvt_pk_bf16_f32 v{t + 2}, v{t + 2}, v{t + 2}")
        e(f"v_lshlrev_b32 v{152 + row}, 16, v{t + 2}")
        e(f"v_lshrrev_b32 v{t + 3}, 8, v98")
        e("s_mov_b64 exec, 1")
        e(f"buffer_store_dword v{152 + row}, v{t + 3}, s[76:79], 0 offen offset:{row * 4} sc1")
        e("s_mov_b64 exec, -1")
    ACC = 96
    for X in range(3):
        for nt in range(5):
            if X == 0 and nt == 0:
                continue
            for r in range(4):
                e(f"v_mov_b32 v{ACC + (X * 5 + nt) * 4 + r}, 0")
    FS = (32, 64)
    e("s_mov_b32 s23, 0")

    def addr_update():
        e(f"v_add_u32 v{CUR}, s23, v{TRA}")
        e(f"v_add_u32 v{CUR + 1}, s23, v{DIRB}")
        e(f"v_add_u32 v{CUR + 2}, s23, v{DIRB + 1}")
        e(f"s_add_u32 s23, s23, {STG}")
        e(f"s_cmp_ge_u32 s23, {R1 * STG}")
        e("s_cselect_b32 s23, 0, s23")

    def reads(kk):
        st = kk
        L = []
        for X in range(3):
            for h in range(2):
                L.append(lambda X=X, h=h: e(
                    f"ds_read_b64_tr_b16 {vr(FS[st] + X * 4 + 2 * h, 2)}, v{CUR} offset:{X * 8192 + kk * 4096 + h * 512}"))
        for nt in range(5):
            L.append(lambda nt=nt: e(
                f"ds_read_b128 {vr(FS[st] + 12 + nt * 4, 4)}, v{CUR + 1 + kk} offset:{nt * 2048}"))
        return L

    def mfmas(st):
        L = []
        for nt in range(5):
            for X in range(3):
                if X == 0 and nt == 0:
                    continue
                L.append(lambda nt=nt, X=X: mfma(ACC + (X * 5 + nt) * 4, FS[st] + X * 4, FS[st] + 12 + nt * 4))
        return L

    def stage(first=False):
        e("s_barrier")
        addr_update()
        if first:
            for f in reads(0):
                f()
        else:
            interleave(mfmas(1), reads(0))
        e("s_waitcnt lgkmcnt(0)")
        interleave(mfmas(0), reads(1))
        e("s_waitcnt lgkmcnt(0)")

    stamp()
    stamp()
    stage(first=True)
    e("s_waitcnt vmcnt(0)")
    stage()
    get_tag(4)
    e("s_lshl_b32 s89, s34, 6")
    set_flag("s89", 4)
    e("s_lshl_b32 s26, s33, 2")
    e("s_add_u32 s26, s26, s25")
    e("s_lshl_b32 s26, s26, 4")
    e("v_lshrrev_b32 v161, 3, v1")
    e("v_add_u32 v161, s26, v161")
    e("s_movk_i32 s27, 3584")
    e("v_mul_lo_u32 v161, v161, s27")
    e("v_and_b32 v160, 7, v1")
    e("v_lshl_add_u32 v161, v160, 6, v161")
    e("s_mul_i32 s26, s32, 28")
    e("s_lshr_b32 s26, s26, 3")
    e("s_lshl_b32 s26, s26, 7")
    e("v_add_u32 v161, s26, v161")
    e(f"v_add_u32 v160, {8 * 3584}, v161")
    e("buffer_load_dword v162, v161, s[68:71], 0 offen")
    e("buffer_load_dword v162, v160, s[68:71], 0 offen")
    e("s_mov_b32 s24, 0")
    e("C1_loop:")
    stage()
    e("s_add_u32 s24, s24, 1")
    e(f"s_cmp_lt_u32 s24, {NST1 - 4}")
    e("s_cbranch_scc1 C1_loop")
    poll_issue(FL_H, 256, 4)
    stage()
    stage()
    stamp()
    poll(FL_H, 256, 4, early=True)
    stamp()
    e("s_barrier")
    for f in mfmas(1):
        f()
    e("v_and_b32 v3, 15, v1")
    e("v_lshrrev_b32 v9, 4, v1")
    e("v_lshlrev_b32 v10, 4, v3")
    e("v_and_b32 v11, 1, v9")
    e("v_lshl_add_u32 v10, v11, 3, v10")
    e("v_lshl_add_u32 v10, v2, 13, v10")
    e(f"v_add_u32 v10, {AB}, v10")
    e("v_lshrrev_b32 v11, 1, v9")
    e("v_lshl_add_u32 v12, v11, 10, v10")
    e("v_mul_u32_u24 v11, 1280, v11")
    e("v_add_u32 v13, v11, v10")
    e("s_nop 7")
    for X in range(3):
        for nt in range(5):
            if X == 0 and nt == 0:
                continue
            a = ACC + (X * 5 + nt) * 4
            pk = 14 + 2 * ((X * 5 + nt) % 2)
            e(f"v_cvt_pk_bf16_f32 v{pk}, v{a}, v{a + 1}")
            e(f"v_cvt_pk_bf16_f32 v{pk + 1}, v{a + 2}, v{a + 3}")
            if X == 0:
                e(f"ds_write_b64 v12, {vr(pk, 2)} offset:{(nt - 1) * 256}")
            else:
                e(f"ds_write_b64 v13, {vr(pk, 2)} offset:{(2048 if X == 1 else 4608) + nt * 256}")
    e("s_waitcnt lgkmcnt(0)")
    e("s_barrier")
    e("v_lshrrev_b32 v8, 4, v1")
    e("v_and_b32 v9, 15, v1")
    e("v_lshl_add_u32 v9, v2, 4, v9")
    e("v_lshlrev_b32 v10, 4, v9")
    e("v_lshl_add_u32 v10, v8, 13, v10")
    e(f"v_add_u32 v10, {AB}, v10")
    e("v_add_u32 v11, s35, v9")
    nb = [0]

    def bar():
        pass

    Q, KV, LG, PP, OA, TT = 16, 24, 88, 96, 100, 116
    for p in range(2):
        e(f"ds_read_b128 {vr(Q + 4 * p, 4)}, v10 offset:{p * 1024}")
    for w in range(8):
        for p in range(2):
            e(f"ds_read_b128 {vr(KV + 8 * w + 4 * p, 4)}, v10 offset:{2048 + p * 1280 + (16 - 2 * w) * 16}")
        if w == 5:
            e("s_waitcnt lgkmcnt(8)")
    for w in range(8):
        e(f"v_mov_b32 v{LG + w}, 0")
    e("s_waitcnt lgkmcnt(0)")
    bar()
    for j in range(8):
        for w in range(8):
            e(f"v_dot2_f32_bf16 v{LG + w}, v{Q + j}, v{KV + 8 * w + j}, v{LG + w}")
        if j % 3 == 2 or (FINE and j % 3 == 0):
            bar()
    e("s_nop 3")
    for w in range(8):
        for p in range(2):
            e(f"ds_read_b128 {vr(KV + 8 * w + 4 * p, 4)}, v10 offset:{4608 + p * 1280 + (16 - 2 * w) * 16}")
        if w == 5:
            e("s_waitcnt lgkmcnt(8)")
    bar()
    e("v_mov_b32 v12, 0xce6e0000")
    for u in range(4):
        e(f"v_cvt_pk_bf16_f32 v14, v{LG + 2 * u}, v{LG + 2 * u + 1}")
        unpack(LG + 2 * u, LG + 2 * u + 1, 14)
    for w in range(8):
        e(f"v_mul_f32 v{LG + w}, 0x3e800000, v{LG + w}")
    for w in range(1, 8):
        e(f"v_cmp_le_u32 vcc, {2 * w}, v11")
        e("s_nop 1")
        e(f"v_cndmask_b32 v{LG + w}, v12, v{LG + w}, vcc")
    bar()
    e(f"v_max3_f32 v13, v{LG}, v{LG + 1}, v{LG + 2}")
    e(f"v_max3_f32 v13, v13, v{LG + 3}, v{LG + 4}")
    e(f"v_max3_f32 v13, v13, v{LG + 5}, v{LG + 6}")
    e(f"v_max_f32 v13, v13, v{LG + 7}")
    e("s_mov_b32 s26, 0x3fb8aa3b")
    for w in range(8):
        e(f"v_sub_f32 v{LG + w}, v{LG + w}, v13")
        e(f"v_mul_f32 v{LG + w}, s26, v{LG + w}")
        e(f"v_exp_f32 v{LG + w}, v{LG + w}")
    e("s_nop 0")
    e(f"v_add_f32 v13, v{LG}, v{LG + 1}")
    for w in range(2, 8):
        e(f"v_add_f32 v13, v13, v{LG + w}")
    e("v_rcp_f32 v13, v13")
    e("s_nop 0")
    bar()
    for w in range(8):
        e(f"v_mul_f32 v{LG + w}, v{LG + w}, v13")
    for u in range(4):
        e(f"v_cvt_pk_bf16_f32 v{PP + u}, v{LG + 2 * u}, v{LG + 2 * u + 1}")
    for j in range(16):
        e(f"v_mov_b32 v{OA + j}, 0")
    e("s_mov_b32 s26, 0x05040100")
    e("s_mov_b32 s27, 0x07060302")
    e("s_waitcnt lgkmcnt(0)")
    bar()
    for u in range(4):
        for j in range(8):
            a = KV + 8 * (2 * u) + j
            b = KV + 8 * (2 * u + 1) + j
            e(f"v_perm_b32 v{TT + 2 * j}, v{b}, v{a}, s26")
            e(f"v_perm_b32 v{TT + 2 * j + 1}, v{b}, v{a}, s27")
        if FINE:
            bar()
        for j in range(16):
            e(f"v_dot2_f32_bf16 v{OA + j}, v{TT + j}, v{PP + u}, v{OA + j}")
        bar()
    e("s_nop 3")
    for j in range(8):
        e(f"v_cvt_pk_bf16_f32 v{TT + j}, v{OA + 2 * j}, v{OA + 2 * j + 1}")
    e(f"ds_write_b128 v10, {vr(TT, 4)}")
    e(f"ds_write_b128 v10, {vr(TT + 4, 4)} offset:1024")
    e("v_lshrrev_b32 v12, 3, v1")
    e("v_lshl_add_u32 v12, v2, 4, v12")
    e("v_bfe_u32 v13, v1, 1, 2")
    e("v_and_b32 v14, 1, v1")
    e("v_lshlrev_b32 v15, 4, v12")
    e("v_lshl_add_u32 v15, v13, 13, v15")
    e("v_lshl_add_u32 v15, v14, 10, v15")
    e(f"v_add_u32 v15, {AB}, v15")
    e("v_and_b32 v13, 7, v1")
    e("v_lshlrev_b32 v13, 4, v13")
    e("v_add_u32 v12, s35, v12")
    e("v_lshl_add_u32 v12, v12, 10, v13")
    e("s_lshl_b32 s26, s36, 7")
    e("v_add_u32 v12, s26, v12")
    e(f"v_add_u32 v13, {8 * 1024}, v12")
    e("s_waitcnt lgkmcnt(0)")
    e(f"ds_read_b128 {vr(TT, 4)}, v15")
    e(f"ds_read_b128 {vr(TT + 4, 4)}, v15 offset:128")
    e("s_waitcnt lgkmcnt(0)")
    e(f"buffer_store_dwordx4 {vr(TT, 4)}, v12, s[16:19], 0 offen sc1")
    e(f"buffer_store_dwordx4 {vr(TT + 4, 4)}, v13, s[16:19], 0 offen sc1")
    e("s_lshl_b32 s31, s35, 3")
    e(f"s_add_u32 s31, s31, {FL_O}")
    e(f"s_add_u32 s89, s89, {FL_O}")
    stamp()
    stamp()

    srd(12, PWS, PWS + 1, D * F * 2, WS_U)
    srd(16, PB1, PB1 + 1, F * 2)
    srd(84, POUT, POUT + 1, S * D * 2)
    srd(68, PB2, PB2 + 1, S * 2)
    e("v_and_b32 v26, 1, v2")
    e("v_lshrrev_b32 v27, 1, v2")
    TA, TB, DIA, DIB = 28, 30, 32, 34
    CU = 36
    for i in range(2):
        e(f"v_lshl_add_u32 v40, v26, 1, {i}")
        tr_read_base(TA + i, 1, "v40", 42)
        e(f"v_lshl_add_u32 v40, v27, 1, {i}")
        tr_read_base(TB + i, 1, "v40", 42)
        e(f"v_add_u32 v{TB + i}, 8192, v{TB + i}")
    dir_read_base(DIA, 1, 42)
    e(f"v_lshl_add_u32 v{DIB}, v27, 12, v{DIA}")
    e(f"v_add_u32 v{DIB}, 8192, v{DIB}")
    e(f"v_lshl_add_u32 v{DIA}, v26, 12, v{DIA}")
    e(f"v_xor_b32 v{DIA + 1}, 64, v{DIA}")
    e(f"v_xor_b32 v{DIB + 1}, 64, v{DIB}")
    ACCS = {"G1": 48, "G2": 48, "WO": 64}
    FG = (80, 112)
    T = 144
    B1, GB = 14, 20
    for i in range(32):
        e(f"v_mov_b32 v{48 + i}, 0")
    e("s_mov_b32 s23, 0")

    def g_addr(seg):
        ra, rb = {"G1": (TA, TB), "WO": (TA, DIB), "G2": (DIA, TB)}[seg]
        for i in range(2):
            e(f"v_add_u32 v{CU + i}, s23, v{ra + i}")
            e(f"v_add_u32 v{CU + 2 + i}, s23, v{rb + i}")
        e("s_add_u32 s23, s23, 16384")
        e(f"s_and_b32 s23, s23, 0x{RG * 16384 - 1:x}")

    def g_reads(st, seg):
        L = []
        kinds = {"G1": ("tr", "tr"), "WO": ("tr", "dir"), "G2": ("dir", "tr")}[seg]
        for kk in range(2):
            for side in range(2):
                fo = FG[st] + 16 * side
                cu = CU + 2 * side
                for i in range(2):
                    if kinds[side] == "tr":
                        for h in range(2):
                            L.append(lambda kk=kk, fo=fo, cu=cu, i=i, h=h: e(
                                f"ds_read_b64_tr_b16 {vr(fo + (kk * 2 + i) * 4 + 2 * h, 2)}, v{cu + i} offset:{kk * 4096 + h * 512}"))
                    else:
                        L.append(lambda kk=kk, fo=fo, cu=cu, i=i: e(
                            f"ds_read_b128 {vr(fo + (kk * 2 + i) * 4, 4)}, v{cu + kk} offset:{i * 2048}"))
        if os.environ.get("HALFRD"):
            L = L[:len(L) // 2]
        if os.environ.get("NORD"):
            L = L[:1]
        return L

    def g_mfmas(st, seg):
        acc = ACCS[seg]
        L = []
        for kk in range(2):
            for mt in range(2):
                for nt in range(2):
                    L.append(lambda kk=kk, mt=mt, nt=nt: mfma(acc + (mt * 2 + nt) * 4, FG[st] + (kk * 2 + mt) * 4,
                                                              FG[st] + 16 + (kk * 2 + nt) * 4))
        return L

    def g_half(st, seg, nxt):
        e("s_barrier")
        if nxt:
            g_addr(nxt)
            interleave(g_mfmas(st, seg), g_reads(1 - st, nxt))
            e("s_waitcnt lgkmcnt(0)")
        else:
            for f in g_mfmas(st, seg):
                f()

    _lp = [0]

    def g_run(k0, k1, seg, last_nxt):
        k = k0
        if k & 1 and k < k1:
            g_half(1, seg, seg)
            k += 1
        npairs = (k1 - k) // 2
        if npairs >= 2:
            lab = f"CG_loop{_lp[0]}"
            _lp[0] += 1
            e("s_mov_b32 s24, 0")
            e(f"{lab}:")
            g_half(0, seg, seg)
            g_half(1, seg, seg)
            e("s_add_u32 s24, s24, 1")
            e(f"s_cmp_lt_u32 s24, {npairs}")
            e(f"s_cbranch_scc1 {lab}")
            k += 2 * npairs
        while k < k1:
            g_half(k & 1, seg, seg)
            k += 1
        g_half(k1 & 1, seg, last_nxt)

    e("v_and_b32 v12, 15, v1")
    e("v_lshl_add_u32 v12, v27, 5, v12")
    e("v_add_u32 v12, s35, v12")
    e("v_lshlrev_b32 v13, 2, v12")
    e(f"buffer_load_dword v{GB}, v13, s[76:79], 0 offen")
    e(f"buffer_load_dword v{GB + 1}, v13, s[76:79], 0 offen offset:64")
    e("v_lshlrev_b32 v13, 1, v12")
    e(f"buffer_load_ushort v{GB + 2}, v13, s[68:71], 0 offen")
    e(f"buffer_load_ushort v{GB + 3}, v13, s[68:71], 0 offen offset:32")
    e("v_lshlrev_b32 v24, 10, v12")
    e("v_lshrrev_b32 v13, 4, v1")
    e("v_lshlrev_b32 v13, 3, v13")
    e("v_lshl_add_u32 v13, v26, 6, v13")
    e("s_lshl_b32 s26, s36, 7")
    e("v_add3_u32 v24, v24, v13, s26")
    e(f"v_add_u32 v25, {16 * 1024}, v24")
    e("s_cmp_ge_u32 s33, 28")
    e("s_cbranch_scc1 C_skip")
    e("v_add_u32 v9, s65, v13")
    e(f"buffer_load_dwordx2 {vr(B1, 2)}, v9, s[16:19], 0 offen")
    e(f"buffer_load_dwordx2 {vr(B1 + 2, 2)}, v9, s[16:19], 0 offen offset:32")
    e("s_barrier")
    g_addr("G1")
    for f in g_reads(0, "G1"):
        f()
    e("s_waitcnt lgkmcnt(0)")
    g_run(0, 3, "G1", "G1")
    e("s_waitcnt vmcnt(0)")
    g_half(0, "G1", "G1")
    set_flag("s89", 4)
    g_run(5, 7, "G1", "G1")
    stamp()
    srd(4, PW2, PW2 + 1, F * S * 2)
    srd(8, PWO, PWO + 1, D * D * 2)
    e("s_lshl_b32 s26, s33, 2")
    e("s_add_u32 s26, s26, s25")
    e("s_lshl_b32 s26, s26, 4")
    e("v_lshrrev_b32 v45, 3, v1")
    e("v_add_u32 v45, s26, v45")
    e("v_lshlrev_b32 v45, 12, v45")
    e("v_and_b32 v46, 7, v1")
    e("v_lshl_add_u32 v45, v46, 6, v45")
    e("s_lshl_b32 s26, s32, 9")
    e("v_add_u32 v45, s26, v45")
    e("buffer_load_dword v47, v45, s[4:7], 0 offen")
    e("s_mul_i32 s26, s64, 2368")
    e("v_lshlrev_b32 v46, 6, v1")
    e("v_add_u32 v46, s26, v46")
    e("buffer_load_dword v47, v46, s[8:11], 0 offen")
    g_run(8, 15, "G1", "G1")
    stamp()
    e(f"v_add_u32 v46, {8 * 4096}, v45")
    e("buffer_load_dword v47, v46, s[4:7], 0 offen")
    g_run(16, 19, "G1", "G1")
    poll_issue("s31", 8, 4)
    g_run(20, 22, "G1", "G1")
    stamp()
    poll("s31", 8, 4, early=True)
    stamp()
    g_run(23, 31, "G1", "WO")
    stamp()
    e("s_mov_b32 s26, 0x40135761")
    e("s_mov_b32 s27, 0x3dd2d3e8")
    e("v_and_b32 v8, 15, v1")
    e("v_lshl_add_u32 v8, v27, 5, v8")
    e("v_lshl_add_u32 v8, v8, 7, v13")
    e(f"v_add_u32 v8, {AB}, v8")
    e("v_lshrrev_b32 v9, 3, v1")
    e("v_lshl_add_u32 v9, v2, 4, v9")
    e("v_and_b32 v10, 7, v1")
    e("v_lshlrev_b32 v10, 4, v10")
    e("v_lshl_add_u32 v11, v9, 7, v10")
    e(f"v_add_u32 v11, {AB}, v11")
    e("s_lshl_b32 s37, s66, 6")
    e("v_add_u32 v9, s37, v9")
    e("s_movk_i32 s37, 3584")
    e("v_mul_lo_u32 v9, v9, s37")
    e("v_add3_u32 v9, v9, v10, s65")
    e(f"v_add_u32 v10, {8 * 3584}, v9")
    e("s_waitcnt vmcnt(0)")
    e("s_nop 7")
    A1 = ACCS["G1"]
    for mt in range(2):
        unpack(T + 8, T + 9, B1 + 2 * mt)
        unpack(T + 10, T + 11, B1 + 2 * mt + 1)
        for nt in range(2):
            a = A1 + (mt * 2 + nt) * 4
            e(f"v_cvt_pk_bf16_f32 v{T}, v{a}, v{a + 1}")
            e(f"v_cvt_pk_bf16_f32 v{T + 1}, v{a + 2}, v{a + 3}")
            unpack(T + 2, T + 3, T)
            unpack(T + 4, T + 5, T + 1)
            for r in range(4):
                e(f"v_add_f32 v{T + 2 + r}, v{T + 2 + r}, v{T + 8 + r}")
            e(f"v_cvt_pk_bf16_f32 v{T}, v{T + 2}, v{T + 3}")
            e(f"v_cvt_pk_bf16_f32 v{T + 1}, v{T + 4}, v{T + 5}")
            unpack(T + 2, T + 3, T)
            unpack(T + 4, T + 5, T + 1)
            for r in range(4):
                gelu(T + 2 + r, T + 6, 26, 27)
            o = T + 12 + (mt * 2 + nt) * 2
            e(f"v_cvt_pk_bf16_f32 v{o}, v{T + 2}, v{T + 3}")
            e(f"v_cvt_pk_bf16_f32 v{o + 1}, v{T + 4}, v{T + 5}")
            e(f"ds_write_b64 v8, {vr(o, 2)} offset:{nt * 2048 + mt * 32}")
    for i in range(16):
        e(f"v_mov_b32 v{A1 + i}, 0")
    e("s_lshl_b32 s89, s66, 5")
    e("s_lshr_b32 s26, s64, 3")
    e("s_add_u32 s89, s89, s26")
    e("s_lshl_b32 s89, s89, 6")
    e(f"s_add_u32 s89, s89, {FL_U}")
    stamp()
    e("s_waitcnt lgkmcnt(0)")
    g_half(0, "WO", "WO")
    e(f"ds_read_b128 {vr(T, 4)}, v11")
    e(f"ds_read_b128 {vr(T + 4, 4)}, v11 offset:1024")
    e("s_waitcnt lgkmcnt(0)")
    e(f"buffer_store_dwordx4 {vr(T, 4)}, v9, s[12:15], 0 offen sc1")
    e(f"buffer_store_dwordx4 {vr(T + 4, 4)}, v10, s[12:15], 0 offen sc1")
    g_half(1, "WO", "WO")
    e("s_waitcnt vmcnt(0)")
    stamp()
    g_half(0, "WO", "WO")
    set_flag("s89", 4)
    e("s_branch C_ph3")
    e("C_skip:")
    e("s_waitcnt vmcnt(0)")
    e("s_barrier")
    set_flag("s89", 4)
    poll("s31", 8, 4)
    e("s_barrier")
    e("s_barrier")
    g_addr("WO")
    for f in g_reads(0, "WO"):
        f()
    e("s_waitcnt lgkmcnt(0)")
    g_half(0, "WO", "WO")
    g_half(1, "WO", "WO")
    g_half(0, "WO", "WO")
    e("C_ph3:")
    e("s_lshl_b32 s91, s36, 11")
    e(f"s_add_u32 s91, s91, {FL_U}")
    assert XU >= 4
    if XU > 4:
        g_run(3, XU - 2, "WO", "WO")
    stamp()
    poll("s91", 28, 4)
    stamp()
    g_run(XU - 1, 7, "WO", "G2")
    g_run(8, 35, "G2", None)
    stamp()
    e("s_waitcnt vmcnt(0)")
    e("s_nop 7")
    ACC1, ACC2 = ACCS["G2"], ACCS["WO"]
    for nt in range(2):
        e(f"v_sub_f32 v{T + 12}, 1.0, v{GB + nt}")
        e(f"v_cvt_pk_bf16_f32 v{T + 12}, v{T + 12}, v{T + 12}")
        e(f"v_lshlrev_b32 v{T + 12}, 16, v{T + 12}")
        e(f"v_lshlrev_b32 v{T + 13}, 16, v{GB + 2 + nt}")
        for mt in range(2):
            a1 = ACC1 + (mt * 2 + nt) * 4
            a2 = ACC2 + (mt * 2 + nt) * 4
            e(f"v_cvt_pk_bf16_f32 v{T}, v{a1}, v{a1 + 1}")
            e(f"v_cvt_pk_bf16_f32 v{T + 1}, v{a1 + 2}, v{a1 + 3}")
            unpack(T + 2, T + 3, T)
            unpack(T + 4, T + 5, T + 1)
            for r in range(4):
                e(f"v_add_f32 v{T + 2 + r}, v{T + 2 + r}, v{T + 13}")
            e(f"v_cvt_pk_bf16_f32 v{T}, v{T + 2}, v{T + 3}")
            e(f"v_cvt_pk_bf16_f32 v{T + 1}, v{T + 4}, v{T + 5}")
            unpack(T + 2, T + 3, T)
            unpack(T + 4, T + 5, T + 1)
            for r in range(4):
                e(f"v_mul_f32 v{T + 2 + r}, v{T + 2 + r}, v{T + 12}")
            e(f"v_cvt_pk_bf16_f32 v{T}, v{T + 2}, v{T + 3}")
            e(f"v_cvt_pk_bf16_f32 v{T + 1}, v{T + 4}, v{T + 5}")
            unpack(T + 2, T + 3, T)
            unpack(T + 4, T + 5, T + 1)
            e(f"v_cvt_pk_bf16_f32 v{T}, v{a2}, v{a2 + 1}")
            e(f"v_cvt_pk_bf16_f32 v{T + 1}, v{a2 + 2}, v{a2 + 3}")
            unpack(T + 6, T + 7, T)
            unpack(T + 8, T + 9, T + 1)
            for r in range(4):
                e(f"v_mul_f32 v{T + 6 + r}, v{T + 6 + r}, v{GB + nt}")
            e(f"v_cvt_pk_bf16_f32 v{T}, v{T + 6}, v{T + 7}")
            e(f"v_cvt_pk_bf16_f32 v{T + 1}, v{T + 8}, v{T + 9}")
            unpack(T + 6, T + 7, T)
            unpack(T + 8, T + 9, T + 1)
            for r in range(4):
                e(f"v_add_f32 v{T + 2 + r}, v{T + 2 + r}, v{T + 6 + r}")
            o = T + 16 + (nt * 2 + mt) * 2
            e(f"v_cvt_pk_bf16_f32 v{o}, v{T + 2}, v{T + 3}")
            e(f"v_cvt_pk_bf16_f32 v{o + 1}, v{T + 4}, v{T + 5}")
            e(f"buffer_store_dwordx2 {vr(o, 2)}, v{24 + nt}, s[84:87], 0 offen offset:{mt * 32} {os.environ.get('OUTPOL', '')}")
    stamp()
    stamp_dump()


def main():
    hdr = [
        "; Gated mix of dilated sliding-window attention and MLP-Mixer token mixing (gfx950).",
        "; Generated by gen/gen3.py.  Workspace: h @0, o @2MiB, u @4MiB, g @6MiB; counters in d_debug.",
        "; @launch grid=(256,1,1) block=(768,1,1) lds=163840",
        '.amdgcn_target "amdgcn-amd-amdhsa--gfx950"',
    ]
    gen()
    txt = "\n".join(hdr + [l for l in common.out if l.strip() != ""]) + "\n"
    if os.environ.get("NOSC1"):
        txt = "\n".join((l.replace(" sc1", "") if "buffer_store" in l else l) for l in txt.split("\n"))
    path = sys.argv[1] if len(sys.argv) > 1 else f"cdna_kernels/{NAME}.s"
    open(path, "w").write(txt)


if __name__ == "__main__":
    main()
```
